```python
import torch

def _softmax(x, axis=-1):
    return torch.softmax(x, dim=axis)

def _gelu(x):
    return torch.nn.functional.gelu(x, approximate='tanh')

def _silu(x):
    return torch.nn.functional.silu(x)

def _sigmoid(x):
    return torch.sigmoid(x)

def _layernorm(x, axis=-1, eps=1e-05):
    m = x.mean(dim=axis, keepdim=True)
    v = x.var(dim=axis, keepdim=True, unbiased=False)
    return (x - m) / torch.sqrt(v + eps)

def _scatter_add(tgt, idx, src, axis=0):
    return tgt.clone().index_add_(axis, idx, src)

def _segment_sum(src, seg, n):
    out = torch.zeros((n,) + src.shape[1:], dtype=src.dtype)
    return out.index_add_(0, seg, src)

def _pad(x, pw):
    flat = tuple((v for pair in reversed(pw) for v in pair))
    return torch.nn.functional.pad(x, flat)
kernel_name = 'gather_scatter__tensor_product_equiv_mace__graph'

def setup_inputs():

    _w = lambda a: (lambda t: t.to(torch.bfloat16) if t.is_floating_point() else t)(torch.as_tensor(a))
    N, deg = (10000, 16)
    Lmax, C, De = (1, 128, 16)
    M = (Lmax + 1) ** 2
    E = N * deg
    src = (lambda lo, hi, *s: torch.randint(lo, hi, s))(0, N, E).to(torch.int64)
    dst = (lambda lo, hi, *s: torch.randint(lo, hi, s))(0, N, E).to(torch.int64)
    r = (lambda *s: torch.randn(*s, dtype=torch.bfloat16) * 0.05)(E, 3).to(float)
    r = r / (torch.linalg.norm(r, dim=-1, keepdim=True).to(float) + 1e-06)
    rx, ry, rz = (r[:, 0].clone(), r[:, 1].clone(), r[:, 2].clone())
    x2, y2, z2 = (rx * rx, ry * ry, rz * rz)
    sh_list = [torch.ones_like(rx), rx, ry, rz, rx * ry, ry * rz, 2.0 * z2 - x2 - y2, rx * rz, x2 - y2, ry * (3.0 * x2 - y2), rx * ry * rz, ry * (4.0 * z2 - x2 - y2), rz * (2.0 * z2 - 3.0 * x2 - 3.0 * y2), rx * (4.0 * z2 - x2 - y2), rz * (x2 - y2), rx * (x2 - 3.0 * y2)]
    sh16 = torch.stack(sh_list, dim=-1).to(float)
    pad = max(0, M - 16)
    sh_full = torch.cat([sh16, torch.zeros((E, pad), dtype=float)], dim=-1)[:, :M]
    cg = ((lambda *s: torch.randn(*s, dtype=torch.bfloat16) * 0.05)(M, M, M) * (1.0 / float(M))).to(float)
    return {'x': _w(((lambda *s: torch.randn(*s, dtype=torch.bfloat16) * 0.05)(N, M, C) * 0.3).to(float)), 'src': _w(src), 'dst': _w(dst), 'sh': _w(sh_full.to(float)), 'edge_attr': _w(((lambda *s: torch.randn(*s, dtype=torch.bfloat16) * 0.05)(E, De) * 0.3).to(float)), 'cg': _w(cg), 'w_r': _w(((lambda *s: torch.randn(*s, dtype=torch.bfloat16) * 0.05)(De, C) * (1.0 / float(De) ** 0.5)).to(float)), 'w_out': _w(((lambda *s: torch.randn(*s, dtype=torch.bfloat16) * 0.05)(C, C) * (1.0 / float(C) ** 0.5)).to(float))}

def reference(x, src, dst, sh, edge_attr, cg, w_r, w_out):
    N = x.shape[0]
    M = x.shape[1]
    C = x.shape[2]
    h = x[src]
    tp = torch.einsum('uvw,euc,ev->ewc', cg, h, sh)
    rw = edge_attr @ w_r
    msg = tp * rw[:, None, :]
    msg2 = msg.reshape(-1, M * C)
    agg = _segment_sum(msg2, dst, N).reshape(N, M, C)
    out = torch.einsum('nmc,cd->nmd', agg, w_out)
    return out
```

```python
import sys

N, E = 10000, 160000
NB, NPB = 250, 40
G1, CH, CAP = 64, 2500, 32
CAPW = 160
D = 8
RING = 0
EAL = 65536
SHL = EAL + 8 * CAPW * 32
LSTRIDE = 192 * 8
LIST = SHL + 8 * CAPW * 8
HIST = LIST + 8 * LSTRIDE
FLAG = HIST + 2048
LDS_MAIN = FLAG + 16
PADW = (N << 10) | 40
PADE = 0x00FFFFFF

L = []
def A(s): L.append(s)

def srd(d, lo, hi, nbytes):
    A(f"s_mov_b32 s{d}, s{lo}")
    A(f"s_mov_b32 s{d+1}, s{hi}")
    A(f"s_mov_b32 s{d+2}, {nbytes}")
    A(f"s_mov_b32 s{d+3}, 0x20000")

def desc(name, nvg, nsg):
    return (f".amdhsa_kernel {name}\n  .amdhsa_next_free_vgpr {nvg}\n  .amdhsa_next_free_sgpr {nsg}\n"
            f"  .amdhsa_accum_offset {(nvg+3)//4*4}\n  .amdhsa_group_segment_fixed_size 0\n  .amdhsa_kernarg_size 88\n"
            f"  .amdhsa_user_sgpr_count 2\n  .amdhsa_user_sgpr_kernarg_segment_ptr 1\n  .amdhsa_system_sgpr_workgroup_id_x 1\n"
            f"  .amdhsa_float_denorm_mode_32 3\n.end_amdhsa_kernel")

def k1():
    CNT = 32768
    A(".globl bin_kernel\n.p2align 8\n.type bin_kernel,@function\nbin_kernel:")
    A(f"s_cmp_ge_u32 s2, {G1}")
    A("s_cbranch_scc1 L_bin_end")
    A("s_load_dwordx4 s[4:7], s[0:1], 8")
    A("s_load_dwordx2 s[20:21], s[0:1], 80")
    A(f"s_mul_i32 s3, s2, {CH*4}")
    A("v_lshlrev_b32 v1, 4, v0")
    A("v_lshlrev_b32 v2, 5, v0")
    A("v_lshlrev_b32 v3, 2, v0")
    for r in range(4): A(f"v_mov_b32 v{4+r}, -1")
    A("v_mov_b32 v8, 0")
    A("s_waitcnt lgkmcnt(0)")
    srd(8, 4, 5, E * 4)
    srd(12, 6, 7, E * 4)
    srd(16, 20, 21, NB * G1 * CAP * 4)
    A("buffer_load_dwordx4 v[12:15], v1, s[12:15], s3 offen")
    A("buffer_load_dwordx4 v[16:19], v1, s[8:11], s3 offen")
    A("ds_write_b128 v2, v[4:7]")
    A("ds_write_b128 v2, v[4:7] offset:16")
    A(f"ds_write_b32 v3, v8 offset:{CNT}")
    A("v_mov_b32 v9, 1")
    A("s_movk_i32 s22, 40")
    A("s_waitcnt lgkmcnt(0)")
    A("s_barrier")
    A(f"v_cmp_gt_u32 vcc, {CH//4}, v0")
    A("s_and_saveexec_b64 s[24:25], vcc")
    A("s_cbranch_execz L_bin_skip")
    A("s_waitcnt vmcnt(1)")
    for i in range(4):
        A(f"v_mul_u32_u24 v{20+i}, 52429, v{12+i}")
    for i in range(4):
        A(f"v_lshrrev_b32 v{20+i}, 21, v{20+i}")
    for i in range(4):
        A(f"v_lshlrev_b32 v{24+i}, 2, v{20+i}")
    for i in range(4):
        A(f"ds_add_rtn_u32 v{28+i}, v{24+i}, v9 offset:{CNT}")
    for i in range(4):
        A(f"v_mul_u32_u24 v{32+i}, s22, v{20+i}")
        A(f"v_sub_u32 v{32+i}, v{12+i}, v{32+i}")
        A(f"v_add_u32 v{36+i}, {i}, v3")
        A(f"v_lshl_or_b32 v{32+i}, v{32+i}, 12, v{36+i}")
    A("s_waitcnt vmcnt(0)")
    for i in range(4):
        A(f"v_lshl_or_b32 v{32+i}, v{16+i}, 18, v{32+i}")
        A(f"v_lshlrev_b32 v{20+i}, 7, v{20+i}")
    A("s_waitcnt lgkmcnt(0)")
    A("s_mov_b64 s[26:27], exec")
    for i in range(4):
        A(f"v_cmp_gt_u32 vcc, {CAP}, v{28+i}")
        A(f"v_lshl_add_u32 v{20+i}, v{28+i}, 2, v{20+i}")
        A("s_and_b64 exec, s[26:27], vcc")
        A(f"ds_write_b32 v{20+i}, v{32+i}")
        A("s_mov_b64 exec, s[26:27]")
    A("L_bin_skip:")
    A("s_mov_b64 exec, -1")
    A("s_waitcnt vmcnt(0) lgkmcnt(0)")
    A("s_barrier")
    A("v_lshrrev_b32 v10, 3, v0")
    A("v_lshlrev_b32 v11, 2, v10")
    A("ds_read_b128 v[12:15], v1")
    A("ds_read_b128 v[16:19], v1 offset:16384")
    A(f"ds_read_b32 v20, v11 offset:{CNT}")
    A(f"ds_read_b32 v21, v11 offset:{CNT+512}")
    A("v_and_b32 v22, 7, v0")
    A("v_lshlrev_b32 v22, 4, v22")
    A("v_lshl_add_u32 v22, v10, 13, v22")
    A("s_lshl_b32 s3, s2, 7")
    A("s_add_u32 s23, s3, 0x100000")
    A("s_waitcnt lgkmcnt(0)")
    A(f"v_cmp_lt_u32 vcc, {CAP}, v20")
    A(f"v_cmp_lt_u32 s[26:27], {CAP}, v21")
    A("s_nop 1")
    A("v_cndmask_b32 v15, v15, -2, vcc")
    A("v_cndmask_b32 v19, v19, -2, s[26:27]")
    A("buffer_store_dwordx4 v[12:15], v22, s[16:19], s3 offen")
    A("buffer_store_dwordx4 v[16:19], v22, s[16:19], s23 offen")
    A("L_bin_end:")
    A("s_endpgm")

ACC = 16
RW = [64, 96]
WR = 128
WO = 144
A1, A2 = 176, 180
CG = 184
SHV = 192
AMF = 194
AM = [198, 200]
XB = [202, 206]
TP = [210, 218]
ENT = [226, 227]
vDMA, vTR, vEaA, vShA, vEntA = 2, 3, 4, 5, 6
sX, sEA, sSH, sWS, sOUT, sTMP = 8, 12, 16, 20, 24, 28
sWave, sRing, sRem, sCnt, sRound, sMode = 3, 52, 53, 54, 55, 56
sE = 64
sT = 80
sM1, sM2 = 82, 84
sSlot = 86
vE = 64
vEid = 68
vKey = 72
vRank = 76
vT = 80
sV = 58
def smask(i): return [58, 60, 62, 94][i]

def sort_phases(first, tag):
    A(f"v_lshlrev_b32 v{vT}, 2, v0")
    A(f"v_mov_b32 v{vT+1}, 0")
    A(f"ds_write_b32 v{vT}, v{vT+1} offset:{HIST}") if HIST < 65536 else None
    if HIST >= 65536:
        A(f"v_add_u32 v{vT}, {HIST}, v{vT}")
        A(f"ds_write_b32 v{vT}, v{vT+1}")
    A(f"v_mov_b32 v{vT+2}, {FLAG}")
    A(f"ds_write_b32 v{vT+2}, v{vT+1}")
    A(f"v_mov_b32 v{vT+4}, {PADW}")
    A(f"v_mov_b32 v{vT+5}, {PADE}")
    A(f"v_lshlrev_b32 v{vT+3}, 3, v0")
    A(f"v_add_u32 v{vT+3}, {LIST}, v{vT+3}")
    for q in range(3):
        A(f"ds_write_b64 v{vT+3}, v[{vT+4}:{vT+5}] offset:{q*4096}")
    A("s_waitcnt lgkmcnt(0)")
    A("s_barrier")
    if first:
        A(f"s_waitcnt vmcnt({first})")
        A(f"v_lshrrev_b32 v{vT+6}, 3, v0")
        A(f"v_mul_u32_u24 v{vT+6}, {CH}, v{vT+6}")
        for i in range(4):
            A(f"v_and_b32 v{vEid+i}, 0xfff, v{vE+i}")
            A(f"v_add_u32 v{vEid+i}, v{vEid+i}, v{vT+6}")
        A(f"v_cmp_eq_u32 vcc, -2, v{vE+3}")
        A(f"v_mov_b32 v{vT+1}, 1")
        A("s_and_saveexec_b64 s[96:97], vcc")
        A(f"ds_write_b32 v{vT+2}, v{vT+1}")
        A("s_mov_b64 exec, -1")
    else:
        A(f"v_mov_b32 v{vT+1}, 1")
    for i in range(4):
        A(f"v_cmp_gt_u32 s[{smask(i)}:{smask(i)+1}], -2, v{vE+i}")
        A(f"v_lshrrev_b32 v{vKey+i}, 26, v{vE+i}")
        A(f"v_bfe_u32 v{vT+6}, v{vE+i}, 12, 3")
        A(f"v_lshl_or_b32 v{vKey+i}, v{vT+6}, 6, v{vKey+i}")
        A(f"v_lshlrev_b32 v{vKey+i}, 2, v{vKey+i}")
        A(f"v_add_u32 v{vKey+i}, {HIST}, v{vKey+i}")
    for i in range(4):
        A(f"s_mov_b64 exec, s[{smask(i)}:{smask(i)+1}]")
        A(f"ds_add_rtn_u32 v{vRank+i}, v{vKey+i}, v{vT+1}")
    A("s_mov_b64 exec, -1")
    if first:
        A("s_waitcnt vmcnt(0) lgkmcnt(0)")
    else:
        A("s_waitcnt lgkmcnt(0)")
    A("s_barrier")
    A(f"ds_read_b32 v{vT+7}, v{vT}")
    if first:
        const_frags()
        A("s_waitcnt lgkmcnt(0)")
    else:
        A("s_waitcnt lgkmcnt(0)")
    A(f"v_mov_b32 v{vT+8}, v{vT+7}")
    for sh in (1, 2, 4, 8):
        A("s_nop 1")
        A(f"v_add_u32_dpp v{vT+8}, v{vT+8}, v{vT+8} row_shr:{sh} row_mask:0xf bank_mask:0xf bound_ctrl:0")
    A("s_nop 1")
    A(f"v_add_u32_dpp v{vT+8}, v{vT+8}, v{vT+8} row_bcast:15 row_mask:0xa bank_mask:0xf")
    A("s_nop 1")
    A(f"v_add_u32_dpp v{vT+8}, v{vT+8}, v{vT+8} row_bcast:31 row_mask:0xc bank_mask:0xf")
    A("s_nop 0")
    A(f"v_readlane_b32 s{sCnt}, v{vT+8}, 63")
    A(f"v_sub_u32 v{vT+8}, v{vT+8}, v{vT+7}")
    A(f"ds_write_b32 v{vT}, v{vT+8}")
    if first:
        A(f"s_cmp_le_u32 s{sCnt}, {CAPW}")
        A(f"s_cbranch_scc1 L_nof_{tag}")
        A(f"ds_write_b32 v{vT+2}, v{vT+1}")
        A(f"L_nof_{tag}:")
    A("s_waitcnt lgkmcnt(0)")
    A("s_barrier")
    if first:
        A(f"ds_read_b32 v{vT+9}, v{vT+2}")
    for i in range(4):
        A(f"ds_read_b32 v{vT+10+i}, v{vKey+i}")
    for i in range(4):
        A(f"v_bfe_u32 v{vT+6}, v{vE+i}, 12, 3")
        A(f"v_mul_u32_u24 v{vKey+i}, {LSTRIDE}, v{vT+6}")
    if first:
        A("s_waitcnt lgkmcnt(4)")
        A(f"v_readfirstlane_b32 s{sT}, v{vT+9}")
        A(f"s_cmp_lg_u32 s{sT}, 0")
        A("s_cbranch_scc1 L_goslow")
    A("s_waitcnt lgkmcnt(0)")
    for i in range(4):
        A(f"v_add_u32 v{vRank+i}, v{vRank+i}, v{vT+10+i}")
        A(f"v_lshl_add_u32 v{vKey+i}, v{vRank+i}, 3, v{vKey+i}")
        A(f"v_add_u32 v{vKey+i}, {LIST}, v{vKey+i}")
        A(f"v_lshrrev_b32 v{vT+6}, 18, v{vE+i}")
        A(f"v_lshlrev_b32 v{vT+6}, 10, v{vT+6}")
        A(f"v_lshrrev_b32 v{vT+7}, 12, v{vE+i}")
        A(f"v_and_or_b32 v{vT+14}, v{vT+7}, 0x38, v{vT+6}")
        A(f"v_mov_b32 v{vT+15}, v{vEid+i}")
        A(f"s_mov_b64 exec, s[{smask(i)}:{smask(i)+1}]")
        A(f"ds_write_b64 v{vKey+i}, v[{vT+14}:{vT+15}]")
        A("s_mov_b64 exec, -1")
    A("s_waitcnt lgkmcnt(0)")
    A("s_barrier")

def const_frags():
    t = 96
    A(f"v_lshrrev_b32 v{t}, 4, v1")
    A(f"v_bfe_u32 v{t+1}, v1, 2, 2")
    A(f"v_and_b32 v{t+2}, 3, v1")
    A(f"v_lshlrev_b32 v{t+3}, 11, v{t}")
    A(f"v_lshl_add_u32 v{t+3}, v{t+1}, 8, v{t+3}")
    A(f"v_lshl_add_u32 v{t+3}, v{t+2}, 4, v{t+3}")
    A(f"s_and_b32 s{sT}, s{sWave}, 3")
    A(f"s_lshl_b32 s{sT}, s{sT}, 6")
    A(f"v_add_u32 v{t+3}, s{sT}, v{t+3}")
    for a in range(2):
        for s in range(4):
            for tt in range(2):
                r = WO + (a * 4 + s) * 4 + 2 * tt
                A(f"ds_read_b64_tr_b16 v[{r}:{r+1}], v{t+3} offset:{s*8192 + tt*1024 + a*8}")
    A(f"v_lshrrev_b32 v{t+4}, 1, v{t}")
    A(f"v_lshlrev_b32 v{t+4}, 11, v{t+4}")
    A(f"v_lshl_add_u32 v{t+4}, v{t+1}, 8, v{t+4}")
    A(f"v_and_b32 v{t+5}, 1, v{t}")
    A(f"v_lshl_add_u32 v{t+4}, v{t+5}, 5, v{t+4}")
    A(f"v_lshl_add_u32 v{t+4}, v{t+2}, 3, v{t+4}")
    A("s_waitcnt lgkmcnt(8)")
    for H in range(2):
        for hf in range(2):
            for tt in range(2):
                r = WR + (H * 2 + hf) * 4 + 2 * tt
                A(f"ds_read_b64_tr_b16 v[{r}:{r+1}], v{t+4} offset:{32768 + tt*1024 + H*128 + hf*64}")
    for u in range(4):
        for p in range(2):
            A(f"v_lshl_or_b32 v{CG+2*u+p}, v{104+u*4+2*p+1}, 16, v{104+u*4+2*p}")

def batch_reads(boff):
    p = boff & 1
    A(f"ds_read_b32 v{ENT[p]}, v{vEntA} offset:{boff*128}")
    A(f"ds_read_b64 v[{SHV}:{SHV+1}], v{vShA} offset:{boff*128}")
    A(f"s_mov_b64 exec, s[{sM1}:{sM1+1}]")
    A(f"ds_read_b128 v[{A1}:{A1+3}], v{vEaA} offset:{boff*512}")
    A(f"s_mov_b64 exec, s[{sM2}:{sM2+1}]")
    A(f"ds_read_b128 v[{A2}:{A2+3}], v{vEaA} offset:{boff*512}")
    A("s_mov_b64 exec, -1")

def rw_mfma(p, q):
    H, hf = q >> 1, q & 1
    d = RW[p] + 16 * H
    a = A1 if hf == 0 else A2
    b = WR + (H * 2 + hf) * 4
    c = "0" if hf == 0 else f"v[{d}:{d+15}]"
    A(f"v_mfma_f32_32x32x16_bf16 v[{d}:{d+15}], v[{a}:{a+3}], v[{b}:{b+3}], {c}")

def am_dot(u, half):
    if half == 0:
        A(f"v_dot2_f32_bf16 v{AMF+u}, v{SHV}, v{CG+2*u}, 0")
    else:
        A(f"v_dot2_f32_bf16 v{AMF+u}, v{SHV+1}, v{CG+2*u+1}, v{AMF+u}")

def am_cvt(p):
    A(f"v_cvt_pk_bf16_f32 v{AM[p]}, v{AMF}, v{AMF+1}")
    A(f"v_cvt_pk_bf16_f32 v{AM[p]+1}, v{AMF+2}, v{AMF+3}")

def tr_reads(e):
    xb = XB[e % 2]
    A(f"ds_read_b64_tr_b16 v[{xb}:{xb+1}], v{vTR} offset:{(e % D)*1024}")
    A(f"ds_read_b64_tr_b16 v[{xb+2}:{xb+3}], v{vTR} offset:{(e % D)*1024+512}")

def tp_mfma(e):
    xb, tp, am = XB[e % 2], TP[e % 2], AM[(e // 16) % 2]
    A(f"v_mfma_f32_4x4x4_16b_bf16 v[{tp}:{tp+3}], v[{am}:{am+1}], v[{xb}:{xb+1}], 0 cbsz:4 abid:{e % 16}")
    A(f"v_mfma_f32_4x4x4_16b_bf16 v[{tp+4}:{tp+7}], v[{am}:{am+1}], v[{xb+2}:{xb+3}], 0 cbsz:4 abid:{e % 16}")

def dma_x(e):
    A(f"s_and_b32 s{sT}, s{sE + e % 16}, 0xfffffc00")
    A(f"s_mov_b32 m0, s{sSlot + e % D}")
    A("s_nop 0")
    A(f"buffer_load_dwordx4 v{vDMA}, s[{sX}:{sX+3}], s{sT} offen lds")

def fmas(e, pk):
    tp, p = TP[e % 2], (e // 16) % 2
    A(f"s_set_gpr_idx_on s{sE + e % 16}, gpr_idx(SRC2,DST)")
    for H in range(2):
        rw = RW[p] + 16 * H + e % 16
        if pk:
            rp = rw & ~1
            sel = "op_sel:[0,1,0] op_sel_hi:[1,1,1]" if rw & 1 else "op_sel:[0,0,0] op_sel_hi:[1,0,1]"
            for w in (0, 2):
                a = ACC + 4 * H + w
                A(f"v_pk_fma_f32 v[{a}:{a+1}], v[{tp+4*H+w}:{tp+4*H+w+1}], v[{rp}:{rp+1}], v[{a}:{a+1}] {sel}")
        else:
            for w in range(4):
                A(f"v_fmac_f32 v{ACC + 4*H + w}, v{tp + 4*H + w}, v{rw}")
    A("s_set_gpr_idx_off")

def k2(pk):
    A(".globl main_kernel\n.p2align 8\n.type main_kernel,@function\nmain_kernel:")
    A(f"s_cmp_ge_u32 s2, {NB}")
    A("s_cbranch_scc1 L_main_end")
    A("s_load_dwordx16 s[32:47], s[0:1], 0")
    A("s_load_dwordx2 s[48:49], s[0:1], 64")
    A("s_load_dwordx2 s[50:51], s[0:1], 80")
    A("v_lshrrev_b32 v7, 6, v0")
    A("v_and_b32 v1, 63, v0")
    A(f"v_readfirstlane_b32 s{sWave}, v7")
    A("v_lshlrev_b32 v8, 4, v0")
    A(f"s_lshl_b32 s{sT}, s2, 13")
    A("s_waitcnt lgkmcnt(0)")
    srd(sWS, 50, 51, NB * G1 * CAP * 4)
    A(f"buffer_load_dwordx4 v[{vE}:{vE+3}], v8, s[{sWS}:{sWS+3}], s{sT} offen")
    nlate = 0
    srd(sTMP, 46, 47, 32768)
    A("v_lshlrev_b32 v9, 4, v1")
    A(f"s_lshl_b32 s{sT}, s{sWave}, 12")
    A(f"s_mov_b32 m0, s{sT}")
    A("s_nop 0")
    for q in range(4):
        A(f"buffer_load_dwordx4 v9, s[{sTMP}:{sTMP+3}], s{sT} offen offset:{q*1024} lds"); nlate += 1
    srd(sEA, 44, 45, 4096)
    A(f"s_and_b32 s{sT}, s{sWave}, 3")
    A(f"s_lshl_b32 s{sT}, s{sT}, 10")
    A(f"s_add_u32 m0, s{sT}, 32768")
    A("s_nop 0")
    A(f"buffer_load_dwordx4 v9, s[{sEA}:{sEA+3}], s{sT} offen lds"); nlate += 1
    srd(sSH, 42, 43, 128)
    A("v_and_b32 v10, 3, v1")
    A("v_lshlrev_b32 v10, 1, v10")
    for u in range(4):
        for v in range(4):
            A(f"buffer_load_ushort v{104+u*4+v}, v10, s[{sSH}:{sSH+3}], 0 offen offset:{u*32+v*8}"); nlate += 1
    srd(sX, 32, 33, N * 1024)
    srd(sEA, 40, 41, E * 32)
    srd(sSH, 38, 39, E * 8)
    srd(sOUT, 48, 49, N * 1024)
    A(f"s_lshl_b32 s{sRing}, s{sWave}, 13")
    for q in range(D):
        A(f"s_add_u32 s{sSlot+q}, s{sRing}, {q*1024}")
    A(f"s_mov_b32 s{sM1}, 0x0f0f0f0f\ns_mov_b32 s{sM1+1}, 0x0f0f0f0f")
    A(f"s_mov_b32 s{sM2}, 0xf0f0f0f0\ns_mov_b32 s{sM2+1}, 0xf0f0f0f0")
    A(f"s_mov_b32 s{sMode}, 0")
    A(f"s_mov_b32 s{sRound}, 0")
    A(f"v_bfe_u32 v11, v1, 2, 2")
    A(f"v_lshrrev_b32 v12, 4, v1")
    A(f"v_and_b32 v13, 3, v1")
    A(f"v_lshlrev_b32 v{vDMA}, 8, v11")
    A(f"v_lshl_add_u32 v{vDMA}, v12, 6, v{vDMA}")
    A(f"v_lshl_add_u32 v{vDMA}, v13, 4, v{vDMA}")
    A(f"v_lshrrev_b32 v14, 5, v1")
    A(f"v_lshlrev_b32 v{vTR}, 8, v14")
    A(f"v_lshl_add_u32 v{vTR}, v11, 6, v{vTR}")
    A(f"v_and_b32 v15, 1, v12")
    A(f"v_lshl_add_u32 v{vTR}, v15, 5, v{vTR}")
    A(f"v_lshl_add_u32 v{vTR}, v13, 3, v{vTR}")
    A(f"v_add_u32 v{vTR}, s{sRing}, v{vTR}")
    for r in range(48): A(f"v_mov_b32 v{ACC+r}, 0")
    for r in range(8): A(f"v_mov_b32 v{A1+r}, 0")
    sort_phases(nlate, "f")
    A("L_sweep:")
    A(f"s_mul_i32 s{sT}, s{sWave}, {LSTRIDE}")
    A(f"s_add_u32 s{sT}, s{sT}, {LIST}")
    A(f"v_lshlrev_b32 v{vEntA}, 3, v1")
    A(f"v_add_u32 v{vEntA}, s{sT}, v{vEntA}")
    A(f"v_lshrrev_b32 v7, 1, v1")
    A(f"v_lshlrev_b32 v7, 3, v7")
    A(f"v_add_u32 v7, s{sT}, v7")
    for m in range(5):
        A(f"ds_read_b32 v{96+m}, v7 offset:{m*256+4}")
    A(f"ds_read_b32 v{ENT[0]}, v{vEntA}")
    A(f"s_mul_i32 s{sT}, s{sWave}, {CAPW*8}")
    A(f"s_add_u32 s{sT}, s{sT}, {SHL}")
    A(f"v_lshrrev_b32 v{vShA}, 2, v1")
    A(f"v_lshlrev_b32 v{vShA}, 3, v{vShA}")
    A(f"v_add_u32 v{vShA}, s{sT}, v{vShA}")
    A(f"s_mul_i32 s{sT+1}, s{sWave}, {CAPW*32}")
    A(f"s_add_u32 s{sT+1}, s{sT+1}, {EAL}")
    A(f"v_bfe_u32 v8, v1, 3, 2")
    A(f"v_and_b32 v9, 3, v1")
    A(f"v_lshl_add_u32 v8, v8, 2, v9")
    A(f"v_lshlrev_b32 v{vEaA}, 5, v8")
    A(f"v_lshrrev_b32 v9, 5, v1")
    A(f"v_lshl_add_u32 v{vEaA}, v9, 4, v{vEaA}")
    A(f"v_add_u32 v{vEaA}, s{sT+1}, v{vEaA}")
    A(f"v_and_b32 v9, 1, v1")
    A(f"v_lshlrev_b32 v10, 4, v9")
    A(f"v_lshlrev_b32 v11, 2, v9")
    A("s_waitcnt lgkmcnt(0)")
    for m in range(5):
        A(f"v_lshl_add_u32 v{104+m}, v{96+m}, 5, v10")
        A(f"v_lshl_add_u32 v{112+m}, v{96+m}, 3, v11")
    for m in range(5):
        A(f"s_add_u32 m0, s{sT+1}, {m*1024}")
        A("s_nop 0")
        A(f"buffer_load_dwordx4 v{104+m}, s[{sEA}:{sEA+3}], 0 offen lds")
        A(f"s_add_u32 m0, s{sT}, {m*256}")
        A("s_nop 0")
        A(f"buffer_load_dword v{112+m}, s[{sSH}:{sSH+3}], 0 offen lds")
    for e in range(D + 1):
        A(f"v_readlane_b32 s{sE+e}, v{ENT[0]}, {e}")
    for e in range(D):
        dma_x(e)
    A(f"s_sub_u32 s{sRem}, s{sCnt}, 1")
    A("s_cbranch_scc1 L_sweep_done")
    A(f"s_waitcnt vmcnt({D})")
    batch_reads(0)
    A("s_waitcnt lgkmcnt(0)")
    for q in range(4): rw_mfma(0, q)
    for h in range(2):
        for u in range(4): am_dot(u, h)
        A("s_nop 2")
    am_cvt(0)
    A(f"s_waitcnt vmcnt({D-1})")
    tr_reads(0)
    A(f"s_waitcnt vmcnt({D-2})")
    tr_reads(1)
    A("s_waitcnt lgkmcnt(2)")
    tp_mfma(0)
    dma_x(D)
    A("s_nop 7")
    A("L_loop:")
    for i in range(32):
        p = i // 16
        j = i % 16
        A(f"; ---- step {i}")
        A(f"s_waitcnt vmcnt({D-2})")
        tr_reads(i + 2)
        A(f"v_readlane_b32 s{sE + (i + D + 1) % 16}, v{ENT[p]}, {j + D + 1}")
        A(f"s_waitcnt lgkmcnt({6 if j == 1 else 2})")
        tp_mfma(i + 1)
        dma_x(i + D + 1)
        if j == 0:
            batch_reads(p + 1)
        if j in (3, 5, 7, 9):
            rw_mfma(1 - p, (j - 3) // 2)
        if j == 10:
            for u in range(4): am_dot(u, 0)
        if j == 11:
            for u in range(4): am_dot(u, 1)
        if j == 12:
            am_cvt(1 - p)
        if i == 20:
            A(f"v_add_u32 v{vEntA}, 256, v{vEntA}")
            A(f"v_add_u32 v{vShA}, 256, v{vShA}")
            A(f"v_add_u32 v{vEaA}, 1024, v{vEaA}")
        fmas(i, pk)
        if j % 4 == 3:
            A(f"s_sub_u32 s{sRem}, s{sRem}, 4")
            if i == 31:
                A("s_cbranch_scc0 L_loop")
            else:
                A("s_cbranch_scc1 L_sweep_done")
    A("L_sweep_done:")
    A("s_waitcnt vmcnt(0) lgkmcnt(0)")
    A(f"s_cmp_eq_u32 s{sMode}, 0")
    A("s_cbranch_scc1 L_epi")
    A(f"s_add_u32 s{sRound}, s{sRound}, 1")
    A(f"s_cmp_ge_u32 s{sRound}, {E // CAPW}")
    A("s_cbranch_scc1 L_epi")
    A("s_branch L_slowload")
    A("L_goslow:")
    A(f"s_mov_b32 s{sMode}, 1")
    A("s_waitcnt lgkmcnt(0)")
    A("L_slowload:")
    A("s_barrier")
    A(f"s_mul_i32 s{sT}, s{sRound}, {CAPW}")
    A(f"v_add_u32 v{vEid}, s{sT}, v0")
    A(f"v_lshlrev_b32 v{vT}, 2, v{vEid}")
    srd(sTMP, 36, 37, E * 4)
    A(f"buffer_load_dword v{vT+1}, v{vT}, s[{sTMP}:{sTMP+3}], 0 offen")
    srd(sWS, 34, 35, E * 4)
    A(f"buffer_load_dword v{vT+2}, v{vT}, s[{sWS}:{sWS+3}], 0 offen")
    A(f"s_mul_i32 s{sT}, s2, {NPB}")
    for i in range(1, 4):
        A(f"v_mov_b32 v{vE+i}, -1")
        A(f"v_mov_b32 v{vEid+i}, 0")
    A("s_waitcnt vmcnt(0)")
    A(f"v_subrev_u32 v{vT+1}, s{sT}, v{vT+1}")
    A(f"v_lshlrev_b32 v{vT+2}, 18, v{vT+2}")
    A(f"v_lshl_or_b32 v{vE}, v{vT+1}, 12, v{vT+2}")
    A(f"v_cmp_gt_u32 vcc, {NPB}, v{vT+1}")
    A(f"s_movk_i32 s{sT}, {CAPW}")
    A(f"v_cmp_gt_u32 s[96:97], s{sT}, v0")
    A("s_nop 1")
    A("s_and_b64 vcc, vcc, s[96:97]")
    A("s_nop 1")
    A(f"v_cndmask_b32 v{vE}, -1, v{vE}, vcc")
    sort_phases(0, "s")
    A("s_branch L_sweep")
    A("L_epi:")
    A(f"s_and_b32 s{sT}, s{sWave}, 1")
    A(f"s_lshl_b32 s{sT}, s{sT}, 3")
    A(f"s_bfe_u32 s{sT+1}, s{sWave}, 0x10001")
    A(f"s_lshl_b32 s{sT+1}, s{sT+1}, 6")
    A(f"s_add_u32 s{sT}, s{sT}, s{sT+1}")
    A(f"s_add_u32 s{sT}, s{sT}, s{sRing}")
    A(f"v_mul_u32_u24 v7, 48, v1")
    A(f"v_add_u32 v7, s{sT}, v7")
    for k in range(5):
        for H in range(2):
            a = ACC + 8 * k + 4 * H
            t = 64 + (k * 2 + H) * 2
            A(f"v_cvt_pk_bf16_f32 v{t}, v{a}, v{a+1}")
            A(f"v_cvt_pk_bf16_f32 v{t+1}, v{a+2}, v{a+3}")
            A(f"ds_write_b64 v7, v[{t}:{t+1}] offset:{H*64*48 + k*8}")
    A(f"v_lshrrev_b32 v8, 4, v1")
    A(f"v_bfe_u32 v9, v1, 2, 2")
    A(f"v_and_b32 v10, 3, v1")
    A(f"v_lshl_add_u32 v11, v8, 3, v9")
    A(f"v_mul_u32_u24 v11, 48, v11")
    A(f"v_lshl_add_u32 v11, v10, 13, v11")
    A(f"v_and_b32 v12, 1, v10")
    A(f"v_lshl_add_u32 v11, v12, 3, v11")
    A(f"v_lshrrev_b32 v12, 1, v10")
    A(f"v_lshl_add_u32 v11, v12, 6, v11")
    A(f"s_lshr_b32 s{sT}, s{sWave}, 2")
    A(f"s_lshl_b32 s{sT+1}, s{sT}, 15")
    A(f"v_add_u32 v11, s{sT+1}, v11")
    A(f"v_and_b32 v12, 15, v1")
    A(f"v_lshlrev_b32 v12, 8, v12")
    A(f"v_lshl_add_u32 v12, v8, 4, v12")
    A(f"s_lshl_b32 s{sT}, s{sT}, 12")
    A(f"s_and_b32 s{sT+1}, s{sWave}, 3")
    A(f"s_lshl_b32 s{sT+1}, s{sT+1}, 6")
    A(f"s_add_u32 s{sT}, s{sT}, s{sT+1}")
    A(f"v_add_u32 v12, s{sT}, v12")
    A(f"s_mul_i32 s{sT}, s2, {NPB*1024}")
    A("s_waitcnt lgkmcnt(0)")
    A("s_barrier")
    def breads(k):
        for s in range(4):
            for tt in range(2):
                r = 16 + k * 16 + s * 4 + 2 * tt
                A(f"ds_read_b64_tr_b16 v[{r}:{r+1}], v11 offset:{k*8 + (32*s + 4*tt)*48}")
    breads(0)
    for k in range(5):
        if k < 4:
            breads(k + 1)
            A("s_waitcnt lgkmcnt(8)")
        else:
            A("s_waitcnt lgkmcnt(0)")
        d = 96 + k * 8 if k < 4 else 176
        for s in range(4):
            for a in range(2):
                b = 16 + k * 16 + s * 4
                w = WO + (a * 4 + s) * 4
                c = "0" if s == 0 else f"v[{d+4*a}:{d+4*a+3}]"
                A(f"v_mfma_f32_16x16x32_bf16 v[{d+4*a}:{d+4*a+3}], v[{w}:{w+3}], v[{b}:{b+3}], {c}")
    A("s_nop 7")
    for k in range(5):
        d = 96 + k * 8 if k < 4 else 176
        o = 200 + k * 4
        for q in range(4):
            A(f"v_cvt_pk_bf16_f32 v{o+q}, v{d+2*q}, v{d+2*q+1}")
        A(f"buffer_store_dwordx4 v[{o}:{o+3}], v12, s[{sOUT}:{sOUT+3}], s{sT} offen")
        if k < 4: A(f"s_add_u32 s{sT}, s{sT}, 8192")
    A("L_main_end:")
    A("s_endpgm")

def build(path, pk=False, extra_empty=0):
    global L
    L = []
    for _ in range(extra_empty):
        A(f"; @launch kernel=bin_kernel grid=({G1},1,1) block=(1024,1,1) lds=36864")
    A(f"; @launch kernel=bin_kernel grid=({G1},1,1) block=(1024,1,1) lds=36864")
    A(f"; @launch kernel=main_kernel grid=({NB},1,1) block=(512,1,1) lds={LDS_MAIN}")
    A('.amdgcn_target "amdgcn-amd-amdhsa--gfx950"')
    A(".text")
    k1()
    k2(pk)
    A('.section .rodata,"a"')
    A(".p2align 6")
    A(desc("bin_kernel", 40, 32))
    A(".p2align 6")
    A(desc("main_kernel", 228, 100))
    open(path, "w").write("\n".join(L) + "\n")

if __name__ == "__main__":
    out = sys.argv[1] if len(sys.argv) > 1 else "gather_scatter__tensor_product_equiv_mace__graph.s"
    build(out)
    print("LDS_MAIN", LDS_MAIN)
```

```python
import sys

N, E = 10000, 160000
NB, NPB = 250, 40
G1, CH, CAP = 64, 2500, 32
ENT_BYTES = NB * G1 * CAP * 4
PREP = 0x200000
PREP_WR = 32768
PREP_CG = 36864
PREP_BYTES = 38912
CAPW = 160
D = 8
EAL = 65536
SHL = EAL + 8 * CAPW * 32
LSTRIDE = 192 * 8
LIST = SHL + 8 * CAPW * 8
HIST = LIST + 8 * LSTRIDE
FLAG = HIST + 2048
LDS_MAIN = FLAG + 16
PADW = (N << 10) | 40
PADE = 0x00FFFFFF

L = []
def A(s): L.append(s)

STAMP = False
def stamp(n, v=200):
    if not STAMP: return
    A("s_memrealtime s[4:5]")
    A("s_waitcnt lgkmcnt(0)")
    A(f"v_writelane_b32 v{v}, s4, {n}")

def srd(d, lo, hi, nbytes):
    A(f"s_mov_b32 s{d}, s{lo}")
    A(f"s_mov_b32 s{d+1}, s{hi}")
    A(f"s_mov_b32 s{d+2}, {nbytes}")
    A(f"s_mov_b32 s{d+3}, 0x20000")

def desc(name, nvg, nsg):
    return (f".amdhsa_kernel {name}\n  .amdhsa_next_free_vgpr {nvg}\n  .amdhsa_next_free_sgpr {nsg}\n"
            f"  .amdhsa_accum_offset {(nvg+3)//4*4}\n  .amdhsa_group_segment_fixed_size 0\n  .amdhsa_kernarg_size 88\n"
            f"  .amdhsa_user_sgpr_count 2\n  .amdhsa_user_sgpr_kernarg_segment_ptr 1\n  .amdhsa_system_sgpr_workgroup_id_x 1\n"
            f"  .amdhsa_float_denorm_mode_32 3\n.end_amdhsa_kernel")

def k1(warm):
    CNT = 32768
    nx, nea, nsh, lpw = warm
    ntot = G1 + 2 + nx + nea + nsh
    A(".globl bin_kernel\n.p2align 8\n.type bin_kernel,@function\nbin_kernel:")
    A(f"s_cmp_ge_u32 s2, {ntot}")
    A("s_cbranch_scc1 L_bin_end")
    if STAMP: A("s_memrealtime s[48:49]")
    A("s_load_dwordx16 s[32:47], s[0:1], 0")
    A("s_load_dwordx2 s[20:21], s[0:1], 80")
    A(f"s_cmp_ge_u32 s2, {G1}")
    A("s_cbranch_scc1 L_bin_other")
    A(f"s_mul_i32 s3, s2, {CH*4}")
    A("v_lshlrev_b32 v1, 4, v0")
    A("v_lshlrev_b32 v2, 5, v0")
    A("v_lshlrev_b32 v3, 2, v0")
    for r in range(4): A(f"v_mov_b32 v{4+r}, -1")
    A("v_mov_b32 v8, 0")
    A("ds_write_b128 v2, v[4:7]")
    A("ds_write_b128 v2, v[4:7] offset:16")
    A(f"ds_write_b32 v3, v8 offset:{CNT}")
    A("s_waitcnt lgkmcnt(0)")
    srd(12, 36, 37, E * 4)
    A("buffer_load_dwordx4 v[12:15], v1, s[12:15], s3 offen")
    srd(8, 34, 35, E * 4)
    A("buffer_load_dwordx4 v[16:19], v1, s[8:11], s3 offen")
    srd(16, 20, 21, ENT_BYTES)
    A("v_mov_b32 v9, 1")
    A("s_movk_i32 s22, 40")
    A("s_barrier")
    A(f"v_cmp_gt_u32 vcc, {CH//4}, v0")
    A("s_and_saveexec_b64 s[24:25], vcc")
    A("s_cbranch_execz L_bin_skip")
    A("s_waitcnt vmcnt(1)")
    for i in range(4):
        A(f"v_mul_u32_u24 v{20+i}, 52429, v{12+i}")
    for i in range(4):
        A(f"v_lshrrev_b32 v{20+i}, 21, v{20+i}")
    for i in range(4):
        A(f"v_lshlrev_b32 v{24+i}, 2, v{20+i}")
    for i in range(4):
        A(f"ds_add_rtn_u32 v{28+i}, v{24+i}, v9 offset:{CNT}")
    for i in range(4):
        A(f"v_mul_u32_u24 v{32+i}, s22, v{20+i}")
        A(f"v_sub_u32 v{32+i}, v{12+i}, v{32+i}")
        A(f"v_add_u32 v{36+i}, {i}, v3")
        A(f"v_lshl_or_b32 v{32+i}, v{32+i}, 12, v{36+i}")
    A("s_waitcnt vmcnt(0)")
    for i in range(4):
        A(f"v_lshl_or_b32 v{32+i}, v{16+i}, 18, v{32+i}")
        A(f"v_lshlrev_b32 v{20+i}, 7, v{20+i}")
    A("s_waitcnt lgkmcnt(0)")
    A("s_mov_b64 s[26:27], exec")
    for i in range(4):
        A(f"v_cmp_gt_u32 vcc, {CAP}, v{28+i}")
        A(f"v_lshl_add_u32 v{20+i}, v{28+i}, 2, v{20+i}")
        A("s_and_b64 exec, s[26:27], vcc")
        A(f"ds_write_b32 v{20+i}, v{32+i}")
        A("s_mov_b64 exec, s[26:27]")
    A("L_bin_skip:")
    A("s_mov_b64 exec, -1")
    A("s_waitcnt vmcnt(0) lgkmcnt(0)")
    A("s_barrier")
    A("v_lshrrev_b32 v10, 3, v0")
    A("v_lshlrev_b32 v11, 2, v10")
    A("ds_read_b128 v[12:15], v1")
    A("ds_read_b128 v[16:19], v1 offset:16384")
    A(f"ds_read_b32 v20, v11 offset:{CNT}")
    A(f"ds_read_b32 v21, v11 offset:{CNT+512}")
    A("v_and_b32 v22, 7, v0")
    A("v_lshlrev_b32 v22, 4, v22")
    A("v_lshl_add_u32 v22, v10, 13, v22")
    A("s_lshl_b32 s3, s2, 7")
    A("v_add_u32 v23, 0x100000, v22")
    A("s_waitcnt lgkmcnt(0)")
    A(f"v_cmp_lt_u32 vcc, {CAP}, v20")
    A(f"v_cmp_lt_u32 s[26:27], {CAP}, v21")
    A("s_nop 1")
    A("v_cndmask_b32 v15, v15, -2, vcc")
    A("v_cndmask_b32 v19, v19, -2, s[26:27]")
    A("buffer_store_dwordx4 v[12:15], v22, s[16:19], s3 offen")
    A("buffer_store_dwordx4 v[16:19], v23, s[16:19], s3 offen")
    A("s_branch L_bin_fin")
    A("L_bin_other:")
    A("v_lshrrev_b32 v2, 6, v0")
    A("v_and_b32 v1, 63, v0")
    A("v_readfirstlane_b32 s3, v2")
    A("s_waitcnt lgkmcnt(0)")
    srd(16, 20, 21, PREP + PREP_BYTES)
    A(f"s_cmp_gt_u32 s2, {G1}")
    A("s_cbranch_scc1 L_bin_o2")
    srd(8, 46, 47, 32768)
    A("v_lshrrev_b32 v2, 4, v1")
    A("v_bfe_u32 v3, v1, 2, 2")
    A("v_and_b32 v4, 3, v1")
    A("v_lshlrev_b32 v5, 11, v2")
    A("v_lshl_add_u32 v5, v3, 4, v5")
    A("v_lshl_add_u32 v5, v4, 1, v5")
    A("s_and_b32 s22, s3, 3")
    A("s_lshr_b32 s23, s3, 2")
    A("s_lshr_b32 s24, s23, 1")
    A("s_and_b32 s25, s23, 1")
    A("s_lshl_b32 s25, s25, 14")
    A("s_lshl_b32 s26, s22, 6")
    A("s_add_u32 s25, s25, s26")
    A("s_lshl_b32 s26, s24, 3")
    A("s_add_u32 s25, s25, s26")
    A("s_add_u32 s26, s25, 8192")
    for q in range(2):
        for i in range(8):
            A(f"buffer_load_ushort v{8+q*8+i}, v5, s[8:11], s{25+q} offen offset:{i*256}")
    A("s_lshl_b32 s27, s22, 13")
    A("s_lshl_b32 s28, s23, 11")
    A("s_add_u32 s27, s27, s28")
    A(f"s_add_u32 s27, s27, {PREP}")
    A("v_lshlrev_b32 v6, 4, v1")
    A("s_waitcnt vmcnt(0)")
    for q in range(8):
        A(f"v_lshl_or_b32 v{24+q}, v{8+2*q+1}, 16, v{8+2*q}")
    A("buffer_store_dwordx4 v[24:27], v6, s[16:19], s27 offen")
    A("buffer_store_dwordx4 v[28:31], v6, s[16:19], s27 offen offset:1024")
    A("s_branch L_bin_fin")
    A("L_bin_o2:")
    A(f"s_cmp_gt_u32 s2, {G1+1}")
    A("s_cbranch_scc1 L_bin_o3")
    A("v_lshlrev_b32 v6, 4, v1")
    A("s_cmp_gt_u32 s3, 4")
    A("s_cbranch_scc1 L_bin_fin")
    A("s_cmp_eq_u32 s3, 4")
    A("s_cbranch_scc1 L_bin_cg")
    srd(8, 44, 45, 4096)
    A("v_lshrrev_b32 v2, 5, v1")
    A("v_and_b32 v3, 31, v1")
    A("v_lshlrev_b32 v5, 11, v2")
    A("v_lshl_add_u32 v5, v3, 1, v5")
    A("s_lshl_b32 s25, s3, 6")
    for i in range(8):
        A(f"buffer_load_ushort v{8+i}, v5, s[8:11], s25 offen offset:{i*256}")
    A("s_lshl_b32 s27, s3, 10")
    A(f"s_add_u32 s27, s27, {PREP+PREP_WR}")
    A("s_waitcnt vmcnt(0)")
    for q in range(4):
        A(f"v_lshl_or_b32 v{24+q}, v{8+2*q+1}, 16, v{8+2*q}")
    A("buffer_store_dwordx4 v[24:27], v6, s[16:19], s27 offen")
    A("s_branch L_bin_fin")
    A("L_bin_cg:")
    srd(8, 42, 43, 128)
    A("v_and_b32 v5, 3, v1")
    A("v_lshlrev_b32 v5, 1, v5")
    for i in range(16):
        A(f"buffer_load_ushort v{8+i}, v5, s[8:11], 0 offen offset:{i*8}")
    A(f"s_mov_b32 s27, {PREP+PREP_CG}")
    A("s_waitcnt vmcnt(0)")
    for q in range(8):
        A(f"v_lshl_or_b32 v{24+q}, v{8+2*q+1}, 16, v{8+2*q}")
    A("buffer_store_dwordx4 v[24:27], v6, s[16:19], s27 offen")
    A("buffer_store_dwordx4 v[28:31], v6, s[16:19], s27 offen offset:1024")
    A("s_branch L_bin_fin")
    A("L_bin_o3:")
    if nx + nea + nsh:
        A(f"s_sub_u32 s22, s2, {G1+2}")
        srd(8, 40, 41, E * 32)
        A(f"s_cmp_lt_u32 s22, {nea}")
        A("s_cbranch_scc1 L_bin_w")
        A(f"s_sub_u32 s22, s22, {nea}")
        srd(8, 38, 39, E * 8)
        A(f"s_cmp_lt_u32 s22, {nsh}")
        A("s_cbranch_scc1 L_bin_w")
        A(f"s_sub_u32 s22, s22, {nsh}")
        srd(8, 32, 33, N * 1024)
        A("L_bin_w:")
        A(f"s_cmp_ge_u32 s3, {lpw // 64}")
        A("s_cbranch_scc1 L_bin_fin")
        A(f"s_mul_i32 s22, s22, {lpw*128}")
        A("v_lshlrev_b32 v5, 7, v0")
        A("v_add_u32 v5, s22, v5")
        A("buffer_load_dword v8, v5, s[8:11], 0 offen")
    A("L_bin_fin:")
    if STAMP:
        A("s_waitcnt vmcnt(0)")
        A("s_memrealtime s[50:51]")
        A("s_waitcnt lgkmcnt(0)")
        A("v_mov_b32 v12, s48")
        A("v_mov_b32 v13, s50")
        srd(16, 20, 21, 0x10000000)
        A("v_lshrrev_b32 v14, 6, v0")
        A("v_lshlrev_b32 v14, 3, v14")
        A("s_lshl_b32 s3, s2, 7")
        A("s_add_u32 s3, s3, 0x8800000")
        A("buffer_store_dwordx2 v[12:13], v14, s[16:19], s3 offen")
    A("L_bin_end:")
    A("s_endpgm")
    return ntot

ACC = 16
RW = 64
WR = 96
WO = 112
A1, A2 = 144, 148
CG = 152
SHV = 160
AMF = 162
AM = [166, 168]
XB = [170, 174]
TP = [178, 186]
ENT = [194, 195]
vRA, vRB = 196, 197
NVG = 204
vDMA, vTR, vEntA, vRiA, vRiB, vKh = 2, 3, 4, 5, 6, 7
sX, sEA, sSH, sWS, sOUT, sTMP = 8, 12, 16, 20, 24, 28
sWave, sRing, sRem, sCnt, sRound, sMode, sNw = 3, 52, 53, 54, 55, 56, 57
sE = 64
sT = 80
sM1, sM2 = 82, 84
sSlot = 86
vE, vEid, vKey, vRank, vRec = 64, 68, 72, 76, 80
vT = 84
vHist, vFlag, vOne = 8, 9, 10
def smask(i): return [64, 66, 68, 70][i]

def sort_phases(first, tag):
    nent = 4 if first else 1
    A(f"v_lshlrev_b32 v{vHist}, 2, v0")
    A(f"v_add_u32 v{vHist}, {HIST}, v{vHist}")
    A(f"v_mov_b32 v{vT}, 0")
    A(f"ds_write_b32 v{vHist}, v{vT}")
    A(f"v_mov_b32 v{vFlag}, {FLAG}")
    A(f"ds_write_b32 v{vFlag}, v{vT}")
    A(f"v_mov_b32 v{vT+2}, {PADW}")
    A(f"v_mov_b32 v{vT+3}, 0")
    A(f"v_lshlrev_b32 v{vT+1}, 3, v0")
    A(f"v_add_u32 v{vT+1}, {LIST}, v{vT+1}")
    for q in range(3):
        A(f"ds_write_b64 v{vT+1}, v[{vT+2}:{vT+3}] offset:{q*4096}")
    A(f"v_mov_b32 v{vT+4}, {PADE}")
    A(f"v_lshlrev_b32 v{vT+5}, 2, v1")
    A(f"v_add_u32 v{vT+5}, s{sRing}, v{vT+5}")
    for q in range(3):
        A(f"ds_write_b32 v{vT+5}, v{vT+4} offset:{q*256}")
    A(f"v_mov_b32 v{vOne}, 1")
    A("s_waitcnt lgkmcnt(0)")
    A("s_barrier")
    if first:
        stamp(1)
        A(f"s_waitcnt vmcnt({first})")
        stamp(2)
        A(f"v_lshrrev_b32 v{vT+6}, 3, v0")
        A(f"v_mul_u32_u24 v{vT+6}, {CH}, v{vT+6}")
        for i in range(4):
            A(f"v_and_b32 v{vEid+i}, 0xfff, v{vE+i}")
            A(f"v_add_u32 v{vEid+i}, v{vEid+i}, v{vT+6}")
    for i in range(nent):
        A(f"v_cmp_gt_u32 s[{smask(i)}:{smask(i)+1}], -2, v{vE+i}")
        A(f"v_lshrrev_b32 v{vKey+i}, 26, v{vE+i}")
        A(f"v_bfe_u32 v{vT+6}, v{vE+i}, 12, 3")
        A(f"v_lshl_or_b32 v{vKey+i}, v{vT+6}, 6, v{vKey+i}")
        A(f"v_lshlrev_b32 v{vKey+i}, 2, v{vKey+i}")
        A(f"v_add_u32 v{vKey+i}, {HIST}, v{vKey+i}")
    A(f"s_mov_b32 s{sNw}, 0")
    for i in range(nent):
        A(f"v_mov_b32 v{vRec+i}, s{sNw}")
        A(f"v_mbcnt_lo_u32_b32 v{vRec+i}, s{smask(i)}, v{vRec+i}")
        A(f"v_mbcnt_hi_u32_b32 v{vRec+i}, s{smask(i)+1}, v{vRec+i}")
        A(f"s_bcnt1_i32_b64 s{sT}, s[{smask(i)}:{smask(i)+1}]")
        A(f"s_add_u32 s{sNw}, s{sNw}, s{sT}")
    for i in range(nent):
        A(f"v_lshlrev_b32 v{vT+6}, 2, v{vRec+i}")
        A(f"v_add_u32 v{vT+6}, s{sRing}, v{vT+6}")
        A(f"s_mov_b64 exec, s[{smask(i)}:{smask(i)+1}]")
        A(f"ds_write_b32 v{vT+6}, v{vEid+i}")
        A(f"ds_add_rtn_u32 v{vRank+i}, v{vKey+i}, v{vOne}")
        A("s_mov_b64 exec, -1")
    A(f"v_lshrrev_b32 v{vT+6}, 1, v1")
    A(f"v_lshlrev_b32 v{vT+6}, 2, v{vT+6}")
    A(f"v_add_u32 v{vT+6}, s{sRing}, v{vT+6}")
    for m in range(5):
        A(f"ds_read_b32 v{vT+7+m}, v{vT+6} offset:{m*128}")
    if first:
        A(f"v_cmp_eq_u32 vcc, -2, v{vE+3}")
        A(f"s_cmp_gt_u32 s{sNw}, {CAPW}")
        A("s_cselect_b64 s[96:97], -1, vcc")
        A("s_mov_b64 exec, s[96:97]")
        A(f"ds_write_b32 v{vFlag}, v{vOne}")
        A("s_mov_b64 exec, -1")
    A(f"s_mul_i32 s{sT}, s{sWave}, {CAPW}")
    for i in range(nent):
        A(f"v_add_u32 v{vRec+i}, s{sT}, v{vRec+i}")
    A(f"s_mul_i32 s{sT}, s{sWave}, {CAPW*32}")
    A(f"s_add_u32 s{sT}, s{sT}, {EAL}")
    A(f"s_mul_i32 s{sT+1}, s{sWave}, {CAPW*8}")
    A(f"s_add_u32 s{sT+1}, s{sT+1}, {SHL}")
    A(f"v_and_b32 v{vT}, 1, v1")
    A(f"v_lshlrev_b32 v{vT+1}, 4, v{vT}")
    A(f"v_lshlrev_b32 v{vT+2}, 2, v{vT}")
    A("s_waitcnt lgkmcnt(0)")
    for m in range(5):
        A(f"s_cmp_le_u32 s{sNw}, {32*m}")
        A(f"s_cbranch_scc1 L_rd_{tag}")
        A(f"v_lshl_add_u32 v{vT+3}, v{vT+7+m}, 5, v{vT+1}")
        A(f"v_lshl_add_u32 v{vT+4}, v{vT+7+m}, 3, v{vT+2}")
        A(f"s_add_u32 m0, s{sT}, {m*1024}")
        A("s_nop 0")
        A(f"buffer_load_dwordx4 v{vT+3}, s[{sEA}:{sEA+3}], 0 offen lds")
        A(f"s_add_u32 m0, s{sT+1}, {m*256}")
        A("s_nop 0")
        A(f"buffer_load_dword v{vT+4}, s[{sSH}:{sSH+3}], 0 offen lds")
    A(f"L_rd_{tag}:")
    A("s_barrier")
    if first: stamp(3)
    A(f"ds_read_b32 v{vT}, v{vHist}")
    A("s_waitcnt lgkmcnt(0)")
    A(f"v_mov_b32 v{vT+1}, v{vT}")
    for sh in (1, 2, 4, 8):
        A("s_nop 1")
        A(f"v_add_u32_dpp v{vT+1}, v{vT+1}, v{vT+1} row_shr:{sh} row_mask:0xf bank_mask:0xf bound_ctrl:0")
    A("s_nop 1")
    A(f"v_add_u32_dpp v{vT+1}, v{vT+1}, v{vT+1} row_bcast:15 row_mask:0xa bank_mask:0xf")
    A("s_nop 1")
    A(f"v_add_u32_dpp v{vT+1}, v{vT+1}, v{vT+1} row_bcast:31 row_mask:0xc bank_mask:0xf")
    A("s_nop 0")
    A(f"v_readlane_b32 s{sCnt}, v{vT+1}, 63")
    A(f"v_sub_u32 v{vT+1}, v{vT+1}, v{vT}")
    A(f"s_mul_i32 s{sT}, s{sWave}, {LSTRIDE//8}")
    A(f"s_add_u32 s{sT}, s{sT}, {LIST//8}")
    A(f"v_add_u32 v{vT+1}, s{sT}, v{vT+1}")
    A(f"ds_write_b32 v{vHist}, v{vT+1}")
    if first:
        A(f"s_cmp_le_u32 s{sCnt}, {CAPW}")
        A(f"s_cbranch_scc1 L_nof_{tag}")
        A(f"ds_write_b32 v{vFlag}, v{vOne}")
        A(f"L_nof_{tag}:")
    A("s_waitcnt lgkmcnt(0)")
    A("s_barrier")
    if first: stamp(4)
    if first:
        A(f"ds_read_b32 v{vT+11}, v{vFlag}")
    for i in range(nent):
        A(f"ds_read_b32 v{vKey+i}, v{vKey+i}")
    for i in range(nent):
        A(f"v_lshrrev_b32 v{vT+2*i}, 18, v{vE+i}")
        A(f"v_lshlrev_b32 v{vT+2*i}, 10, v{vT+2*i}")
        A(f"v_lshrrev_b32 v{vT+10}, 12, v{vE+i}")
        A(f"v_and_or_b32 v{vT+2*i}, v{vT+10}, 0x38, v{vT+2*i}")
        A(f"v_mov_b32 v{vT+2*i+1}, v{vRec+i}")
    A("s_waitcnt lgkmcnt(0)")
    if first:
        A(f"v_readfirstlane_b32 s{sT}, v{vT+11}")
        A(f"s_cmp_lg_u32 s{sT}, 0")
        A("s_cbranch_scc1 L_goslow")
    for i in range(nent):
        A(f"v_add_lshl_u32 v{vKey+i}, v{vRank+i}, v{vKey+i}, 3")
    for i in range(nent):
        A(f"s_mov_b64 exec, s[{smask(i)}:{smask(i)+1}]")
        A(f"ds_write_b64 v{vKey+i}, v[{vT+2*i}:{vT+2*i+1}]")
    A("s_mov_b64 exec, -1")
    A("s_waitcnt lgkmcnt(0)")
    A("s_barrier")
    if first: stamp(5)

def idx_reads(p, off):
    A(f"ds_read_b32 v{ENT[p]}, v{vEntA} offset:{off}")
    A(f"ds_read_b32 v{vRA}, v{vRiA} offset:{off}")
    A(f"ds_read_b32 v{vRB}, v{vRiB} offset:{off}")

def rec_reads():
    A(f"v_lshl_add_u32 v{vRA}, v{vRA}, 5, v{vKh}")
    A(f"v_lshlrev_b32 v{vRB}, 3, v{vRB}")
    A(f"v_add_u32 v{vRB}, {SHL}, v{vRB}")
    A(f"ds_read_b64 v[{SHV}:{SHV+1}], v{vRB}")
    A(f"s_mov_b64 exec, s[{sM1}:{sM1+1}]")
    A(f"ds_read_b128 v[{A1}:{A1+3}], v{vRA}")
    A(f"s_mov_b64 exec, s[{sM2}:{sM2+1}]")
    A(f"ds_read_b128 v[{A2}:{A2+3}], v{vRA}")
    A("s_mov_b64 exec, -1")

def rw_mfma(q):
    H, hf = q >> 1, q & 1
    d = RW + 16 * H
    a = A1 if hf == 0 else A2
    b = WR + (H * 2 + hf) * 4
    c = "0" if hf == 0 else f"v[{d}:{d+15}]"
    A(f"v_mfma_f32_32x32x16_bf16 v[{d}:{d+15}], v[{a}:{a+3}], v[{b}:{b+3}], {c}")

def am_dot(u, half):
    if half == 0:
        A(f"v_dot2_f32_bf16 v{AMF+u}, v{SHV}, v{CG+2*u}, 0")
    else:
        A(f"v_dot2_f32_bf16 v{AMF+u}, v{SHV+1}, v{CG+2*u+1}, v{AMF+u}")

def am_cvt(p):
    A(f"v_cvt_pk_bf16_f32 v{AM[p]}, v{AMF}, v{AMF+1}")
    A(f"v_cvt_pk_bf16_f32 v{AM[p]+1}, v{AMF+2}, v{AMF+3}")

def tr_reads(e):
    xb = XB[e % 2]
    A(f"ds_read_b64_tr_b16 v[{xb}:{xb+1}], v{vTR} offset:{(e % D)*1024}")
    A(f"ds_read_b64_tr_b16 v[{xb+2}:{xb+3}], v{vTR} offset:{(e % D)*1024+512}")

def tp_mfma(e):
    xb, tp, am = XB[e % 2], TP[e % 2], AM[0]
    A(f"v_mfma_f32_4x4x4_16b_bf16 v[{tp}:{tp+3}], v[{am}:{am+1}], v[{xb}:{xb+1}], 0 cbsz:4 abid:{e % 16}")
    A(f"v_mfma_f32_4x4x4_16b_bf16 v[{tp+4}:{tp+7}], v[{am}:{am+1}], v[{xb+2}:{xb+3}], 0 cbsz:4 abid:{e % 16}")

def dma_x(e):
    A(f"s_and_b32 s{sT}, s{sE + e % 16}, 0xfffffc00")
    A(f"s_mov_b32 m0, s{sSlot + e % D}")
    A("s_nop 0")
    A(f"buffer_load_dwordx4 v{vDMA}, s[{sX}:{sX+3}], s{sT} offen lds")

def fmas(e):
    tp = TP[e % 2]
    A(f"s_set_gpr_idx_on s{sE + e % 16}, gpr_idx(SRC2,DST)")
    for H in range(2):
        rw = RW + 16 * H + e % 16
        rp = rw & ~1
        sel = "op_sel:[0,1,0] op_sel_hi:[1,1,1]" if rw & 1 else "op_sel:[0,0,0] op_sel_hi:[1,0,1]"
        for w in (0, 2):
            a = ACC + 4 * H + w
            A(f"v_pk_fma_f32 v[{a}:{a+1}], v[{tp+4*H+w}:{tp+4*H+w+1}], v[{rp}:{rp+1}], v[{a}:{a+1}] {sel}")
    A("s_set_gpr_idx_off")

def wave_addrs():
    A(f"s_mul_i32 s{sT}, s{sWave}, {LSTRIDE}")
    A(f"s_add_u32 s{sT}, s{sT}, {LIST}")
    A(f"v_lshlrev_b32 v{vEntA}, 3, v1")
    A(f"v_add_u32 v{vEntA}, s{sT}, v{vEntA}")
    A(f"s_add_u32 s{sT}, s{sT}, 4")
    A(f"v_lshrrev_b32 v{vRiB}, 2, v1")
    A(f"v_lshlrev_b32 v{vRiB}, 3, v{vRiB}")
    A(f"v_add_u32 v{vRiB}, s{sT}, v{vRiB}")
    A(f"v_bfe_u32 v11, v1, 3, 2")
    A(f"v_and_b32 v12, 3, v1")
    A(f"v_lshl_add_u32 v11, v11, 2, v12")
    A(f"v_lshlrev_b32 v{vRiA}, 3, v11")
    A(f"v_add_u32 v{vRiA}, s{sT}, v{vRiA}")

def k2(VM):
    A(".globl main_kernel\n.p2align 8\n.type main_kernel,@function\nmain_kernel:")
    A(f"s_cmp_ge_u32 s2, {NB}")
    A("s_cbranch_scc1 L_main_end")
    stamp(0)
    A("s_load_dwordx2 s[50:51], s[0:1], 80")
    A("s_load_dwordx16 s[32:47], s[0:1], 0")
    A("s_load_dwordx2 s[48:49], s[0:1], 64")
    A("v_lshrrev_b32 v11, 6, v0")
    A("v_and_b32 v1, 63, v0")
    A(f"v_readfirstlane_b32 s{sWave}, v11")
    A("v_lshlrev_b32 v12, 4, v0")
    A(f"s_lshl_b32 s{sT}, s2, 13")
    A("v_lshlrev_b32 v13, 4, v1")
    A(f"s_and_b32 s{sT+1}, s{sWave}, 3")
    A(f"s_lshl_b32 s{sT+1}, s{sT+1}, 13")
    A(f"s_add_u32 s{sT+1}, s{sT+1}, {PREP}")
    A("s_waitcnt lgkmcnt(0)")
    srd(sWS, 50, 51, PREP + PREP_BYTES)
    A(f"buffer_load_dwordx4 v[{vE}:{vE+3}], v12, s[{sWS}:{sWS+3}], s{sT} offen")
    nlate = 0
    A(f"s_mov_b32 s{sT}, {PREP+PREP_WR}")
    for q in range(4):
        A(f"buffer_load_dwordx4 v[{WR+4*q}:{WR+4*q+3}], v13, s[{sWS}:{sWS+3}], s{sT} offen offset:{q*1024}"); nlate += 1
    A(f"s_mov_b32 s{sT}, {PREP+PREP_CG}")
    for q in range(2):
        A(f"buffer_load_dwordx4 v[{CG+4*q}:{CG+4*q+3}], v13, s[{sWS}:{sWS+3}], s{sT} offen offset:{q*1024}"); nlate += 1
    for f in range(8):
        if f == 4: A(f"s_add_u32 s{sT+1}, s{sT+1}, 4096")
        A(f"buffer_load_dwordx4 v[{WO+4*f}:{WO+4*f+3}], v13, s[{sWS}:{sWS+3}], s{sT+1} offen offset:{(f%4)*1024}"); nlate += 1
    srd(sX, 32, 33, N * 1024)
    srd(sEA, 40, 41, E * 32)
    srd(sSH, 38, 39, E * 8)
    srd(sOUT, 48, 49, N * 1024)
    A(f"s_lshl_b32 s{sRing}, s{sWave}, 13")
    for q in range(D):
        A(f"s_add_u32 s{sSlot+q}, s{sRing}, {q*1024}")
    A(f"s_mov_b32 s{sM1}, 0x0f0f0f0f\ns_mov_b32 s{sM1+1}, 0x0f0f0f0f")
    A(f"s_mov_b32 s{sM2}, 0xf0f0f0f0\ns_mov_b32 s{sM2+1}, 0xf0f0f0f0")
    A(f"s_mov_b32 s{sMode}, 0")
    A(f"s_mov_b32 s{sRound}, 0")
    A(f"v_bfe_u32 v11, v1, 2, 2")
    A(f"v_lshrrev_b32 v12, 4, v1")
    A(f"v_and_b32 v13, 3, v1")
    A(f"v_lshlrev_b32 v{vDMA}, 8, v11")
    A(f"v_lshl_add_u32 v{vDMA}, v12, 6, v{vDMA}")
    A(f"v_lshl_add_u32 v{vDMA}, v13, 4, v{vDMA}")
    A(f"v_lshrrev_b32 v14, 5, v1")
    A(f"v_lshlrev_b32 v{vTR}, 8, v14")
    A(f"v_lshl_add_u32 v{vTR}, v11, 6, v{vTR}")
    A(f"v_and_b32 v15, 1, v12")
    A(f"v_lshl_add_u32 v{vTR}, v15, 5, v{vTR}")
    A(f"v_lshl_add_u32 v{vTR}, v13, 3, v{vTR}")
    A(f"v_add_u32 v{vTR}, s{sRing}, v{vTR}")
    A(f"v_lshlrev_b32 v{vKh}, 4, v14")
    A(f"v_add_u32 v{vKh}, {EAL}, v{vKh}")
    wave_addrs()
    for r in range(48): A(f"v_mov_b32 v{ACC+r}, 0")
    for r in range(8): A(f"v_mov_b32 v{A1+r}, 0")
    sort_phases(nlate, "f")
    A("L_sweep:")
    idx_reads(0, 0)
    A("s_waitcnt lgkmcnt(0)")
    for e in range(D + 1):
        A(f"v_readlane_b32 s{sE+e}, v{ENT[0]}, {e}")
    for e in range(D):
        dma_x(e)
    stamp(6)
    A(f"s_waitcnt vmcnt({D})")
    A("s_barrier")
    stamp(7)
    A(f"s_sub_u32 s{sRem}, s{sCnt}, 1")
    A("s_cbranch_scc1 L_sweep_done")
    rec_reads()
    A("s_waitcnt lgkmcnt(0)")
    for q in range(4): rw_mfma(q)
    for h in range(2):
        for u in range(4): am_dot(u, h)
        A("s_nop 2")
    am_cvt(0)
    A(f"s_waitcnt vmcnt({D-1})")
    tr_reads(0)
    A(f"s_waitcnt vmcnt({D-2})")
    tr_reads(1)
    A("s_waitcnt lgkmcnt(2)")
    tp_mfma(0)
    dma_x(D)
    A("s_nop 7")
    stamp(8)
    A("L_loop:")
    for j in range(16):
        A(f"; ---- step {j}")
        A(f"s_waitcnt vmcnt({VM})")
        tr_reads(j + 2)
        A(f"v_readlane_b32 s{sE + (j + D + 1) % 16}, v{ENT[0]}, {j + D + 1}")
        A(f"s_waitcnt lgkmcnt({5 if j in (1, 4) else 2})")
        if j == 15:
            am_cvt(0)
            A(f"v_mov_b32 v{ENT[0]}, v{ENT[1]}")
            A("s_nop 0")
        tp_mfma(j + 1)
        dma_x(j + D + 1)
        if j == 0:
            idx_reads(1, 128)
            A(f"v_add_u32 v{vEntA}, 128, v{vEntA}")
            A(f"v_add_u32 v{vRiA}, 128, v{vRiA}")
            A(f"v_add_u32 v{vRiB}, 128, v{vRiB}")
            A("s_nop 7")
        if j == 3:
            rec_reads()
        if j == 8:
            for u in range(4): am_dot(u, 0)
        if j == 9:
            for u in range(4): am_dot(u, 1)
        fmas(j)
        if j % 4 == 3:
            A(f"s_sub_u32 s{sRem}, s{sRem}, 4")
            A("s_cbranch_scc1 L_sweep_done")
        if j == 15:
            for q in range(4): rw_mfma(q)
            A("s_branch L_loop")
    A("L_sweep_done:")
    A("s_waitcnt vmcnt(0) lgkmcnt(0)")
    A(f"s_cmp_eq_u32 s{sMode}, 0")
    A("s_cbranch_scc1 L_epi")
    A(f"s_add_u32 s{sRound}, s{sRound}, 1")
    A(f"s_cmp_ge_u32 s{sRound}, {E // CAPW}")
    A("s_cbranch_scc1 L_epi")
    A("s_branch L_slowload")
    A("L_goslow:")
    A(f"s_mov_b32 s{sMode}, 1")
    A("s_waitcnt vmcnt(0) lgkmcnt(0)")
    A("L_slowload:")
    A("s_barrier")
    wave_addrs()
    A(f"s_mul_i32 s{sT}, s{sRound}, {CAPW}")
    A(f"v_add_u32 v{vEid}, s{sT}, v0")
    A(f"v_lshlrev_b32 v{vT}, 2, v{vEid}")
    srd(sTMP, 36, 37, E * 4)
    A(f"buffer_load_dword v{vT+1}, v{vT}, s[{sTMP}:{sTMP+3}], 0 offen")
    srd(sWS, 34, 35, E * 4)
    A(f"buffer_load_dword v{vT+2}, v{vT}, s[{sWS}:{sWS+3}], 0 offen")
    A(f"s_mul_i32 s{sT}, s2, {NPB}")
    A("s_waitcnt vmcnt(0)")
    A(f"v_subrev_u32 v{vT+1}, s{sT}, v{vT+1}")
    A(f"v_lshlrev_b32 v{vT+2}, 18, v{vT+2}")
    A(f"v_lshl_or_b32 v{vE}, v{vT+1}, 12, v{vT+2}")
    A(f"v_cmp_gt_u32 vcc, {NPB}, v{vT+1}")
    A(f"s_movk_i32 s{sT}, {CAPW}")
    A(f"v_cmp_gt_u32 s[96:97], s{sT}, v0")
    A("s_nop 1")
    A("s_and_b64 vcc, vcc, s[96:97]")
    A("s_nop 1")
    A(f"v_cndmask_b32 v{vE}, -1, v{vE}, vcc")
    sort_phases(0, "s")
    A("s_branch L_sweep")
    A("L_epi:")
    stamp(9)
    A(f"s_and_b32 s{sT}, s{sWave}, 1")
    A(f"s_lshl_b32 s{sT}, s{sT}, 3")
    A(f"s_bfe_u32 s{sT+1}, s{sWave}, 0x10001")
    A(f"s_lshl_b32 s{sT+1}, s{sT+1}, 6")
    A(f"s_add_u32 s{sT}, s{sT}, s{sT+1}")
    A(f"s_add_u32 s{sT}, s{sT}, s{sRing}")
    A(f"v_mul_u32_u24 v15, 48, v1")
    A(f"v_add_u32 v15, s{sT}, v15")
    for k in range(5):
        for H in range(2):
            a = ACC + 8 * k + 4 * H
            t = 64 + (k * 2 + H) * 2
            A(f"v_cvt_pk_bf16_f32 v{t}, v{a}, v{a+1}")
            A(f"v_cvt_pk_bf16_f32 v{t+1}, v{a+2}, v{a+3}")
            A(f"ds_write_b64 v15, v[{t}:{t+1}] offset:{H*64*48 + k*8}")
    A(f"v_lshrrev_b32 v7, 4, v1")
    A(f"v_bfe_u32 v8, v1, 2, 2")
    A(f"v_and_b32 v9, 3, v1")
    A(f"v_lshl_add_u32 v11, v7, 3, v8")
    A(f"v_mul_u32_u24 v11, 48, v11")
    A(f"v_lshl_add_u32 v11, v9, 13, v11")
    A(f"v_and_b32 v12, 1, v9")
    A(f"v_lshl_add_u32 v11, v12, 3, v11")
    A(f"v_lshrrev_b32 v12, 1, v9")
    A(f"v_lshl_add_u32 v11, v12, 6, v11")
    A(f"s_lshr_b32 s{sT}, s{sWave}, 2")
    A(f"s_lshl_b32 s{sT+1}, s{sT}, 15")
    A(f"v_add_u32 v11, s{sT+1}, v11")
    A(f"v_and_b32 v12, 15, v1")
    A(f"v_lshlrev_b32 v12, 8, v12")
    A(f"v_lshl_add_u32 v12, v7, 4, v12")
    A(f"s_lshl_b32 s{sT}, s{sT}, 12")
    A(f"s_and_b32 s{sT+1}, s{sWave}, 3")
    A(f"s_lshl_b32 s{sT+1}, s{sT+1}, 6")
    A(f"s_add_u32 s{sT}, s{sT}, s{sT+1}")
    A(f"v_add_u32 v12, s{sT}, v12")
    A(f"s_mul_i32 s{sT}, s2, {NPB*1024}")
    A("s_waitcnt lgkmcnt(0)")
    A("s_barrier")
    stamp(10)
    def breads(k):
        for s in range(4):
            for tt in range(2):
                r = 16 + k * 16 + s * 4 + 2 * tt
                A(f"ds_read_b64_tr_b16 v[{r}:{r+1}], v11 offset:{k*8 + (32*s + 4*tt)*48}")
    def dreg(k): return 144 + k * 8
    def fin(k):
        d = dreg(k)
        o = 96 + (k % 4) * 4 if k < 4 else 184
        for q in range(4):
            A(f"v_cvt_pk_bf16_f32 v{o+q}, v{d+2*q}, v{d+2*q+1}")
        A(f"buffer_store_dwordx4 v[{o}:{o+3}], v12, s[{sOUT}:{sOUT+3}], s{sT} offen")
        if k < 4: A(f"s_add_u32 s{sT}, s{sT}, 8192")
    breads(0)
    for k in range(5):
        if k < 4:
            breads(k + 1)
            A("s_waitcnt lgkmcnt(8)")
        else:
            A("s_waitcnt lgkmcnt(0)")
        d = dreg(k)
        for s in range(4):
            for a in range(2):
                b = 16 + k * 16 + s * 4
                w = WO + (a * 4 + s) * 4
                c = "0" if s == 0 else f"v[{d+4*a}:{d+4*a+3}]"
                A(f"v_mfma_f32_16x16x32_bf16 v[{d+4*a}:{d+4*a+3}], v[{w}:{w+3}], v[{b}:{b+3}], {c}")
        if k > 0: fin(k - 1)
    A("s_nop 7")
    fin(4)
    if STAMP:
        stamp(11)
        A("s_waitcnt vmcnt(0)")
        stamp(12)
        A(f"v_writelane_b32 v200, s{sCnt}, 13")
        A("s_getreg_b32 s4, hwreg(HW_REG_XCC_ID)")
        A("v_writelane_b32 v200, s4, 14")
        srd(sWS, 50, 51, 0x10000000)
        A(f"s_lshl_b32 s{sT}, s2, 3")
        A(f"s_add_u32 s{sT}, s{sT}, s{sWave}")
        A(f"s_lshl_b32 s{sT}, s{sT}, 8")
        A(f"s_add_u32 s{sT}, s{sT}, 0x8000000")
        A("v_lshlrev_b32 v7, 2, v1")
        A(f"buffer_store_dword v200, v7, s[{sWS}:{sWS+3}], s{sT} offen")
    A("L_main_end:")
    A("s_endpgm")

def build(path, stamps=False, warm=(0, 0, 0, 64), VM=6):
    global L, STAMP
    STAMP = stamps
    L = []
    ntot = G1 + 2 + sum(warm[:3])
    A(f"; @launch kernel=bin_kernel grid=({ntot},1,1) block=(1024,1,1) lds=36864")
    A(f"; @launch kernel=main_kernel grid=({NB},1,1) block=(512,1,1) lds={LDS_MAIN}")
    A('.amdgcn_target "amdgcn-amd-amdhsa--gfx950"')
    A(".text")
    k1(warm)
    k2(VM)
    A('.section .rodata,"a"')
    A(".p2align 6")
    A(desc("bin_kernel", 40, 56))
    A(".p2align 6")
    A(desc("main_kernel", NVG, 100))
    open(path, "w").write("\n".join(L) + "\n")

if __name__ == "__main__":
    cfg = {"a": (0, 0, 0, 64), "b": (0, 125, 32, 320), "c": (114, 57, 15, 704)}
    for k, w in cfg.items():
        build(f"v3{k}.s", warm=w)
        build(f"v3{k}_st.s", warm=w, stamps=True)
    print("LDS_MAIN", LDS_MAIN)
```

```python
import sys

KN = "gather_scatter__tensor_product_equiv_mace__graph_kernel"
N, E = 10000, 160000
NB, NPB = 250, 40
G1, CH = 125, 1280
PL1 = 0x200000
WS_BYTES = PL1 + G1 * 16384
CAPW = 160
D = 8
EAL = 65536
SHL = EAL + 8 * CAPW * 32
LSTRIDE = 192 * 8
LIST = SHL + 8 * CAPW * 8
HIST = LIST + 8 * LSTRIDE
DEG = HIST + 40 * 256
NODE = DEG + 256
FLAG = NODE + 256
LDS_MAIN = FLAG + 16
PADW = (N << 10) | 40
PADE = 0x00FFFFFF
STG = EAL
CNT = 32768
SPIN = 4000
SC = "sc1"

L = []
def A(s): L.append(s)

STAMP = False
STFL = 'sc0 sc1'
vST = 240
def stamp(n):
    if not STAMP: return
    A("s_memrealtime s[4:5]")
    A("s_waitcnt lgkmcnt(0)")
    A(f"v_writelane_b32 v{vST}, s4, {n}")

def srd(d, lo, hi, nbytes):
    A(f"s_mov_b32 s{d}, s{lo}")
    A(f"s_mov_b32 s{d+1}, s{hi}")
    A(f"s_mov_b32 s{d+2}, {nbytes}")
    A(f"s_mov_b32 s{d+3}, 0x20000")

def desc(name, nvg, nsg):
    return (f".amdhsa_kernel {name}\n  .amdhsa_next_free_vgpr {nvg}\n  .amdhsa_next_free_sgpr {nsg}\n"
            f"  .amdhsa_accum_offset {(nvg+3)//4*4}\n  .amdhsa_group_segment_fixed_size 0\n  .amdhsa_kernarg_size 88\n"
            f"  .amdhsa_user_sgpr_count 2\n  .amdhsa_user_sgpr_kernarg_segment_ptr 1\n  .amdhsa_system_sgpr_workgroup_id_x 1\n"
            f"  .amdhsa_float_denorm_mode_32 3\n.end_amdhsa_kernel")

def dpp_scan(v):
    for sh in (1, 2, 4, 8):
        A("s_nop 1")
        A(f"v_add_u32_dpp v{v}, v{v}, v{v} row_shr:{sh} row_mask:0xf bank_mask:0xf bound_ctrl:0")
    A("s_nop 1")
    A(f"v_add_u32_dpp v{v}, v{v}, v{v} row_bcast:15 row_mask:0xa bank_mask:0xf")
    A("s_nop 1")
    A(f"v_add_u32_dpp v{v}, v{v}, v{v} row_bcast:31 row_mask:0xc bank_mask:0xf")

ACC = 16
RW = 64
WR = 96
A1, A2 = 112, 116
CG = 120
SHV = 128
AMF = 130
AM = 134
XB = [136, 140]
TP = [144, 152]
ENT = [160, 161]
vRA, vRB = 162, 163
WO = 164
NVG = 244
vDMA, vTR, vEntA, vRiA, vRiB, vKh = 2, 3, 4, 5, 6, 7
sX, sEA, sSH, sWS, sOUT, sTMP = 8, 12, 16, 20, 24, 28
sWave, sRing, sRem, sCnt, sRound, sMode, sNw, sG2, sRecW = 3, 52, 53, 54, 55, 56, 57, 58, 59
sEaW, sShW = 76, 77
sE = 64
sT = 80
sM1, sM2 = 82, 84
sSlot = 86
sNon, sTg = 6, 98
sEntO = 7
vE, vKey, vRank = 64, 72, 80
vB = [88, 89]
vG = 90
vP3, vP3o = 91, 92
vEo = 93
vFl = 94
vT = 128
vHist, vFlag, vOne, v64 = 8, 9, 10, 11
SREC = 228
def smask(i): return 64 + 2 * i

def grp(g, body, tag):
    if g == 1:
        A(f"s_cmp_eq_u32 s{sG2}, 0")
        A(f"s_cbranch_scc1 L_{tag}")
    body()
    if g == 1:
        A(f"L_{tag}:")

def sort_init(first):
    A(f"v_lshlrev_b32 v{vHist}, 2, v0")
    A(f"v_add_u32 v{vHist}, {HIST}, v{vHist}")
    A(f"v_mov_b32 v{vT}, 0")
    for q in range(5):
        A(f"ds_write_b32 v{vHist}, v{vT} offset:{q*2048}")
    A(f"v_lshlrev_b32 v{vT+5}, 2, v1")
    if first:
        A(f"v_add_u32 v{vT+1}, {DEG}, v{vT+5}")
        A(f"ds_write_b32 v{vT+1}, v1")
    A(f"v_mov_b32 v{vT+4}, {PADE}")
    A(f"v_add_u32 v{vT+5}, s{sRing}, v{vT+5}")
    for q in range(3):
        A(f"ds_write_b32 v{vT+5}, v{vT+4} offset:{q*256}")
    A(f"v_mov_b32 v{vT+2}, {PADW}")
    A(f"v_mov_b32 v{vT+3}, 0")
    A(f"v_lshlrev_b32 v{vT+1}, 3, v0")
    A(f"v_add_u32 v{vT+1}, {LIST}, v{vT+1}")
    for q in range(3):
        A(f"ds_write_b64 v{vT+1}, v[{vT+2}:{vT+3}] offset:{q*4096}")
    A(f"v_mov_b32 v{vOne}, 1")
    A(f"v_mov_b32 v{v64}, 64")

def ents(g, first):
    return [4 * g + i for i in range(3)] if first else [0]

def mk(i):
    return 64 + 2 * ((i // 4) * 3 + i % 4)

def rec_dma(m, tag):
    A(f"s_cmp_le_u32 s{sNw}, {32*m}")
    A(f"s_cbranch_scc1 L_rd_{tag}{m}")
    A(f"v_lshl_add_u32 v{vT+26}, v{vT+16+m}, 5, v{vP3}")
    A(f"v_lshl_add_u32 v{vT+27}, v{vT+16+m}, 3, v{vP3o}")
    A(f"s_add_u32 m0, s{sEaW}, {m*1024}")
    A("s_nop 0")
    A(f"buffer_load_dwordx4 v{vT+26}, s[{sEA}:{sEA+3}], 0 offen lds")
    A(f"s_add_u32 m0, s{sShW}, {m*256}")
    A("s_nop 0")
    A(f"buffer_load_dword v{vT+27}, s[{sSH}:{sSH+3}], 0 offen lds")
    A(f"L_rd_{tag}{m}:")

def sort_phases(first, tag):
    ngrp = 2 if first else 1
    sched = DMASCHED if first else [[0], [], [], []]
    A(f"s_mov_b32 s{sNw}, 0")
    def p1(g):
        ids = ents(g, first)
        for i in ids:
            A(f"v_and_b32 v{vT}, 1, v{vE+i}")
            A(f"v_cmp_ne_u32 s[{mk(i)}:{mk(i)+1}], 0, v{vT}")
            A(f"v_bfe_u32 v{vT+8+i}, v{vE+i}, 12, 6")
            A(f"v_lshrrev_b32 v{vKey+i}, 26, v{vE+i}")
            A(f"v_lshl_or_b32 v{vKey+i}, v{vT+8+i}, 6, v{vKey+i}")
            A(f"v_lshl_add_u32 v{vKey+i}, v{vKey+i}, 2, s{sT+1}")
            A(f"v_lshl_add_u32 v{vT+8+i}, v{vT+8+i}, 2, s{sT+1}")
            A(f"v_bfe_u32 v{vT+2+i%4}, v{vE+i}, 1, 11")
            A(f"v_add_u32 v{vT+2+i%4}, v{vT+2+i%4}, v{vG}")
        A(f"v_mov_b32 v{vB[g]}, s{sNw}")
        for i in ids:
            A(f"v_mbcnt_lo_u32_b32 v{vB[g]}, s{mk(i)}, v{vB[g]}")
            A(f"v_mbcnt_hi_u32_b32 v{vB[g]}, s{mk(i)+1}, v{vB[g]}")
            A(f"s_bcnt1_i32_b64 s{sT}, s[{mk(i)}:{mk(i)+1}]")
            A(f"s_add_u32 s{sNw}, s{sNw}, s{sT}")
        A(f"v_lshl_add_u32 v{vT+1}, v{vB[g]}, 2, s{sRing}")
        for i in ids:
            A(f"s_mov_b64 exec, s[{mk(i)}:{mk(i)+1}]")
            A(f"ds_write_b32 v{vT+1}, v{vT+2+i%4} offset:{4*(i%4)}")
        for i in ids:
            A(f"s_mov_b64 exec, s[{mk(i)}:{mk(i)+1}]")
            if first: A(f"ds_add_u32 v{vT+8+i}, v{v64} offset:{DEG-HIST}")
            A(f"ds_add_rtn_u32 v{vRank+i}, v{vKey+i}, v{vOne}")
        A("s_mov_b64 exec, -1")
        A(f"v_add_u32 v{vB[g]}, s{sRecW}, v{vB[g]}")
    A(f"s_mov_b32 s{sT+1}, {HIST}")
    for g in range(ngrp): grp(g, lambda: p1(g), f"p1_{tag}")
    for m in range(5 if first else 2):
        A(f"ds_read_b32 v{vT+16+m}, v{vFl} offset:{m*128}")
    if first:
        A(f"s_cmp_gt_u32 s{sNw}, {CAPW}")
        A("s_cselect_b64 s[96:97], -1, s[96:97]")
        A("s_mov_b64 exec, s[96:97]")
        A(f"ds_write_b32 v{vFlag}, v{vOne}")
        A("s_mov_b64 exec, -1")
    A("s_waitcnt lgkmcnt(0)")
    if first:
        for m in sched[0]: rec_dma(m, tag)
    else:
        rec_dma(0, tag); rec_dma(1, tag)
    A("s_barrier")
    if first: stamp(8)
    A(f"v_lshlrev_b32 v{vT}, 2, v1")
    A(f"v_add_u32 v{vT}, {HIST}, v{vT}")
    if first:
        A(f"ds_read_b32 v{vT+1}, v{vT} offset:{DEG-HIST}")
        A(f"s_mul_i32 s{sT+1}, s{sWave}, 5")
        A(f"v_add_u32 v{vT+3}, s{sT+1}, v1")
        A("s_mov_b32 exec_hi, 0xff")
        A("s_waitcnt lgkmcnt(0)")
        for k in range(5):
            A(f"v_readlane_b32 s{40+k}, v{vT+1}, s{sT+1}")
            A(f"s_add_u32 s{sT+1}, s{sT+1}, 1")
        for k in range(5):
            A(f"v_cmp_lt_u32 vcc, s{40+k}, v{vT+1}")
            A(f"s_bcnt1_i32_b64 s{40+k}, vcc")
        for k in range(5):
            A(f"v_writelane_b32 v{vT+2}, s{40+k}, {k}")
        A("s_mov_b64 exec, 0x1f")
        A(f"v_lshrrev_b32 v{vT+4}, 3, v{vT+2}")
        A(f"v_and_b32 v{vT+5}, 1, v{vT+4}")
        A(f"v_mul_u32_u24 v{vT+5}, 7, v{vT+5}")
        A(f"v_and_b32 v{vT+2}, 7, v{vT+2}")
        A(f"v_xor_b32 v{vT+2}, v{vT+2}, v{vT+5}")
        A(f"v_lshl_add_u32 v{vT+2}, v{vT+2}, 3, v{vT+4}")
        A(f"v_lshlrev_b32 v{vT+2}, 2, v{vT+2}")
        A(f"v_add_u32 v{vT+2}, {NODE}, v{vT+2}")
        A(f"ds_write_b32 v{vT+2}, v{vT+3}")
        A("s_mov_b64 exec, -1")
        for m in sched[1]: rec_dma(m, tag)
        A("s_waitcnt lgkmcnt(0)")
        A("s_barrier")
    A(f"s_lshl_b32 s{sT}, s{sWave}, 5")
    A(f"s_add_u32 s{sT}, s{sT}, {NODE}")
    A(f"v_mov_b32 v{vT+1}, s{sT}")
    A(f"ds_read_b128 v[{vT+4}:{vT+7}], v{vT+1}")
    A(f"ds_read_b32 v{vT+8}, v{vT+1} offset:16")
    A("s_waitcnt lgkmcnt(0)")
    for k in range(5):
        A(f"v_lshl_add_u32 v{vT+4+k}, v{vT+4+k}, 8, v{vT}")
        A(f"ds_read_b32 v{vT+10+k}, v{vT+4+k}")
    A(f"s_mul_i32 s{sT}, s{sWave}, {LSTRIDE//8}")
    A(f"s_add_u32 s{sT}, s{sT}, {LIST//8}")
    A("s_waitcnt lgkmcnt(0)")
    A(f"v_add3_u32 v{vT}, v{vT+10}, v{vT+11}, v{vT+12}")
    A(f"v_add3_u32 v{vT}, v{vT}, v{vT+13}, v{vT+14}")
    A(f"v_mov_b32 v{vT+1}, v{vT}")
    dpp_scan(vT + 1)
    A("s_nop 0")
    A(f"v_readlane_b32 s{sCnt}, v{vT+1}, 63")
    A(f"v_sub_u32 v{vT+1}, v{vT+1}, v{vT}")
    A(f"v_add_u32 v{vT+1}, s{sT}, v{vT+1}")
    A(f"s_mov_b32 s{sT}, 0x1000000")
    for k in range(5):
        A(f"ds_write_b32 v{vT+4+k}, v{vT+1}")
        if k < 4: A(f"v_add3_u32 v{vT+1}, v{vT+1}, v{vT+10+k}, s{sT}")
    if first:
        A(f"s_cmp_le_u32 s{sCnt}, {CAPW}")
        A(f"s_cbranch_scc1 L_nof_{tag}")
        A(f"ds_write_b32 v{vFlag}, v{vOne}")
        A(f"L_nof_{tag}:")
        for m in sched[2]: rec_dma(m, tag)
    A("s_waitcnt lgkmcnt(0)")
    A("s_barrier")
    if first: stamp(9)
    if first:
        A(f"ds_read_b32 v{vT+28}, v{vFlag}")
    def p3a(g):
        ids = ents(g, first)
        for i in ids:
            A(f"ds_read_b32 v{vKey+i}, v{vKey+i}")
        for i in ids:
            A(f"v_lshrrev_b32 v{vT+2*i}, 18, v{vE+i}")
            A(f"v_lshlrev_b32 v{vT+2*i}, 10, v{vT+2*i}")
            A(f"v_add_u32 v{vT+2*i+1}, {i%4}, v{vB[g]}")
    for g in range(ngrp): grp(g, lambda: p3a(g), f"p3a_{tag}")
    A("s_waitcnt lgkmcnt(0)")
    if first:
        A(f"v_readfirstlane_b32 s{sT}, v{vT+28}")
        A(f"s_cmp_lg_u32 s{sT}, 0")
        A("s_cbranch_scc1 L_goslow")
    def p3b(g):
        ids = ents(g, first)
        for i in ids:
            A(f"v_lshrrev_b32 v{vT+29}, 21, v{vKey+i}")
            A(f"v_or_b32 v{vT+2*i}, v{vT+2*i}, v{vT+29}")
            A(f"v_and_b32 v{vKey+i}, 0xffffff, v{vKey+i}")
            A(f"v_add_lshl_u32 v{vKey+i}, v{vRank+i}, v{vKey+i}, 3")
        for i in ids:
            A(f"s_mov_b64 exec, s[{mk(i)}:{mk(i)+1}]")
            A(f"ds_write_b64 v{vKey+i}, v[{vT+2*i}:{vT+2*i+1}]")
        A("s_mov_b64 exec, -1")
    for g in range(ngrp): grp(g, lambda: p3b(g), f"p3b_{tag}")
    if first:
        for m in sched[3]: rec_dma(m, tag)
    A("s_waitcnt lgkmcnt(0)")
    A("s_barrier")

def idx_reads(p, off):
    A(f"ds_read_b32 v{ENT[p]}, v{vEntA} offset:{off}")
    A(f"ds_read_b32 v{vRA}, v{vRiA} offset:{off}")
    A(f"ds_read_b32 v{vRB}, v{vRiB} offset:{off}")

def rec_reads():
    A(f"v_lshl_add_u32 v{vRA}, v{vRA}, 5, v{vKh}")
    A(f"v_lshl_add_u32 v{vRB}, v{vRB}, 3, s101")
    A(f"ds_read_b64 v[{SHV}:{SHV+1}], v{vRB}")
    A(f"s_mov_b64 exec, s[{sM1}:{sM1+1}]")
    A(f"ds_read_b128 v[{A1}:{A1+3}], v{vRA}")
    A(f"s_mov_b64 exec, s[{sM2}:{sM2+1}]")
    A(f"ds_read_b128 v[{A2}:{A2+3}], v{vRA}")
    A("s_mov_b64 exec, -1")

def rw_mfma(q):
    H, hf = q >> 1, q & 1
    d = RW + 16 * H
    a = A1 if hf == 0 else A2
    b = WR + (H * 2 + hf) * 4
    c = "0" if hf == 0 else f"v[{d}:{d+15}]"
    A(f"v_mfma_f32_32x32x16_bf16 v[{d}:{d+15}], v[{a}:{a+3}], v[{b}:{b+3}], {c}")

def am_dot(u, half):
    if half == 0:
        A(f"v_dot2_f32_bf16 v{AMF+u}, v{SHV}, v{CG+2*u}, 0")
    else:
        A(f"v_dot2_f32_bf16 v{AMF+u}, v{SHV+1}, v{CG+2*u+1}, v{AMF+u}")

def am_cvt():
    A(f"v_cvt_pk_bf16_f32 v{AM}, v{AMF}, v{AMF+1}")
    A(f"v_cvt_pk_bf16_f32 v{AM+1}, v{AMF+2}, v{AMF+3}")

def tr_reads(e):
    xb = XB[e % 2]
    A(f"ds_read_b64_tr_b16 v[{xb}:{xb+1}], v{vTR} offset:{(e % D)*1024}")
    A(f"ds_read_b64_tr_b16 v[{xb+2}:{xb+3}], v{vTR} offset:{(e % D)*1024+512}")

def tp_mfma(e):
    xb, tp = XB[e % 2], TP[e % 2]
    A(f"v_mfma_f32_4x4x4_16b_bf16 v[{tp}:{tp+3}], v[{AM}:{AM+1}], v[{xb}:{xb+1}], 0 cbsz:4 abid:{e % 16}")
    A(f"v_mfma_f32_4x4x4_16b_bf16 v[{tp+4}:{tp+7}], v[{AM}:{AM+1}], v[{xb+2}:{xb+3}], 0 cbsz:4 abid:{e % 16}")

def dma_x(e):
    A(f"s_mov_b32 m0, s{sSlot + e % D}")
    A(f"s_and_b32 s{sT}, s{sE + e % 16}, 0xfffffc00")
    A(f"buffer_load_dwordx4 v{vDMA}, s[{sX}:{sX+3}], s{sT} offen lds")

def fmas(e):
    tp = TP[e % 2]
    A(f"s_set_gpr_idx_on s{sE + e % 16}, gpr_idx(SRC2,DST)")
    for H in range(2):
        rw = RW + 16 * H + e % 16
        for w in range(4):
            A(f"v_fmac_f32 v{ACC + 4*H + w}, v{tp + 4*H + w}, v{rw}")
    A("s_set_gpr_idx_off")

def wave_addrs():
    A(f"s_mul_i32 s{sT}, s{sWave}, {LSTRIDE}")
    A(f"s_add_u32 s{sT}, s{sT}, {LIST}")
    A(f"v_lshl_add_u32 v{vEntA}, v1, 3, s{sT}")
    A(f"s_add_u32 s{sT}, s{sT}, 4")
    A(f"v_lshrrev_b32 v{vRiB}, 2, v1")
    A(f"v_lshl_add_u32 v{vRiB}, v{vRiB}, 3, s{sT}")
    A(f"v_bfe_u32 v12, v1, 3, 2")
    A(f"v_and_b32 v13, 3, v1")
    A(f"v_lshl_add_u32 v12, v12, 2, v13")
    A(f"v_lshl_add_u32 v{vRiA}, v12, 3, s{sT}")

def weight_frags():
    t = vT
    A(f"v_lshrrev_b32 v12, 4, v1")
    A(f"v_lshrrev_b32 v13, 5, v1")
    A(f"v_and_b32 v14, 1, v12")
    A(f"v_lshlrev_b32 v15, 13, v13")
    A(f"v_lshl_add_u32 v15, v14, 11, v15")
    A(f"v_and_b32 v12, 15, v1")
    A(f"v_lshl_add_u32 v15, v12, 3, v15")
    A(f"s_and_b32 s{sT}, s{sWave}, 1")
    A(f"s_lshl_b32 s{sT}, s{sT}, 7")
    A(f"s_add_u32 s{sT}, s{sT}, 4096")
    A(f"v_add_u32 v15, s{sT}, v15")
    A("s_mov_b32 s40, 0x05040100")
    A("s_mov_b32 s41, 0x07060302")
    def rd(s):
        for i in range(8):
            r = t + (s % 2) * 16 + 2 * i
            A(f"ds_read_b64 v[{r}:{r+1}], v15 offset:{s*16384 + i*256}")
    def pm(s):
        for a in range(4):
            for j in range(4):
                r = t + (s % 2) * 16 + 4 * j + (a >> 1)
                A(f"v_perm_b32 v{WO + (a*4+s)*4 + j}, v{r+2}, v{r}, s{40 + (a & 1)}")
    rd(0)
    A(f"v_lshlrev_b32 v13, 14, v13")
    A(f"v_lshl_add_u32 v13, v14, 5, v13")
    A(f"v_bfe_u32 v12, v1, 2, 2")
    A(f"v_lshl_add_u32 v13, v12, 8, v13")
    A(f"v_and_b32 v12, 3, v1")
    A(f"v_lshl_add_u32 v13, v12, 3, v13")
    A(f"v_lshl_add_u32 v14, v12, 1, s{sRing}")
    for s in range(4):
        if s < 3:
            A("s_waitcnt lgkmcnt(4)")
            rd(s + 1)
            A("s_waitcnt lgkmcnt(8)")
        else:
            A("s_waitcnt lgkmcnt(0)")
        pm(s)
    for H in range(2):
        for hf in range(2):
            for tt in range(2):
                r = WR + (H * 2 + hf) * 4 + 2 * tt
                A(f"ds_read_b64_tr_b16 v[{r}:{r+1}], v13 offset:{3072 + tt*8192 + H*128 + hf*64}")
    A("s_waitcnt lgkmcnt(0)")
    for h in range(2):
        for i in range(8):
            A(f"ds_read_u16 v{t+h*8+i}, v14 offset:{2048 + (h*8+i)*8}")
        A("s_waitcnt lgkmcnt(0)")
    for q in range(8):
        A(f"v_lshl_or_b32 v{CG+q}, v{t+2*q+1}, 16, v{t+2*q}")

def ent_load():
    A(f"buffer_load_dwordx4 v[{vE}:{vE+3}], v{vEo}, s[{sWS}:{sWS+3}], s{sEntO} offen {SC}")
    A(f"buffer_load_dwordx4 v[{vE+4}:{vE+7}], v{vEo}, s[{sWS}:{sWS+3}], s98 offen {SC}")

def rec_consts():
    A(f"s_mul_i32 s{sEaW}, s{sWave}, {CAPW*32}")
    A(f"s_add_u32 s{sEaW}, s{sEaW}, {EAL}")
    A(f"s_mul_i32 s{sShW}, s{sWave}, {CAPW*8}")
    A(f"s_add_u32 s{sShW}, s{sShW}, {SHL}")
    A(f"v_and_b32 v{vP3o}, 1, v1")
    A(f"v_lshlrev_b32 v{vP3}, 4, v{vP3o}")
    A(f"v_lshlrev_b32 v{vP3o}, 2, v{vP3o}")
    A(f"v_lshrrev_b32 v{vFl}, 1, v1")
    A(f"v_lshl_add_u32 v{vFl}, v{vFl}, 2, s{sRing}")

def nonce_wait(tag, vN, first_cnt, sd=sWS):
    A(f"s_movk_i32 s{sRem}, {SPIN}")
    A("v_mov_b32 v12, 0")
    A(f"s_waitcnt vmcnt({first_cnt})")
    A(f"s_branch L_non1{tag}")
    A(f"L_non{tag}:")
    A("s_waitcnt vmcnt(0)")
    A(f"L_non1{tag}:")
    A(f"v_readfirstlane_b32 s{sNon}, v{vN}")
    A(f"s_cmp_lg_u32 s{sNon}, 0")
    A(f"s_cbranch_scc1 L_non_ok{tag}")
    A(f"s_sub_u32 s{sRem}, s{sRem}, 1")
    A(f"s_cbranch_scc1 L_non_ok{tag}")
    A(f"buffer_load_dword v{vN}, v12, s[{sd}:{sd+3}], 0 offen {SC}")
    A(f"s_branch L_non{tag}")
    A(f"L_non_ok{tag}:")

def kernel(VM, PRE):
    A(f".globl {KN}\n.p2align 8\n.type {KN},@function\n{KN}:")
    A(f"s_cmp_ge_u32 s2, {NB}")
    A("s_cbranch_scc1 L_main_end")
    stamp(0)
    A("s_load_dwordx16 s[32:47], s[0:1], 0")
    A("s_load_dwordx4 s[48:51], s[0:1], 64")
    A("s_load_dwordx2 s[60:61], s[0:1], 80")
    A("s_memrealtime s[62:63]")
    A("v_lshrrev_b32 v11, 6, v0")
    A("v_and_b32 v1, 63, v0")
    A(f"v_readfirstlane_b32 s{sWave}, v11")
    P = WO
    vN, vL16 = 238, P + 41
    d, sr, li = P, P + 4, P + 8
    oA, oB, vS64, vS4, vS16 = range(P + 12, P + 17)
    bb, rk = P + 20, P + 24
    A(f"v_lshlrev_b32 v{vL16}, 4, v1")
    A(f"v_mov_b64 v[{vT}:{vT+1}], 0")
    A(f"v_mov_b64 v[{vT+2}:{vT+3}], 0")
    A(f"v_mov_b32 v{vFlag}, {FLAG}")
    A(f"ds_write_b32 v{vFlag}, v{vT}")
    A(f"s_lshl_b32 s{sRing}, s{sWave}, 13")
    A(f"s_mul_i32 s72, s2, {CH*4}")
    A(f"v_lshlrev_b32 v{oA}, 3, v0")
    A(f"s_lshl_b32 s{sT}, s{sWave}, 5")
    A(f"s_add_u32 s{sT}, s{sT}, 1024")
    A(f"v_add_u32 v{li+2}, s{sT}, v1")
    A(f"v_lshlrev_b32 v{oB}, 2, v{li+2}")
    A(f"s_mov_b32 s73, {STG}")
    A(f"v_lshl_add_u32 v{vS16}, v0, 4, s73")
    A(f"v_lshl_add_u32 v{vS4}, v0, 2, s73")
    for q in range(4):
        A(f"ds_write_b128 v{vS16}, v[{vT}:{vT+3}] offset:{q*8192}")
    A(f"ds_write_b32 v{vS4}, v{vT} offset:{CNT}")
    A("s_waitcnt lgkmcnt(0)")
    srd(sWS, 50, 51, 256)
    A(f"s_cmp_ge_u32 s2, {G1}")
    A("s_cbranch_scc1 L_noload")
    A(f"s_or_b32 s{sT}, s2, s{sWave}")
    A("s_cbranch_scc1 L_nopub")
    A("s_lshl_b32 s62, s62, 2")
    A("s_or_b32 s62, s62, 0x80000000")
    A("v_mov_b32 v12, s62")
    A("v_mov_b32 v13, 0")
    A("s_mov_b64 exec, 1")
    A(f"buffer_store_dword v12, v13, s[{sWS}:{sWS+3}], 0 offen {SC}")
    A("s_mov_b64 exec, -1")
    A("L_nopub:")
    srd(sTMP, 36, 37, E * 4)
    srd(sOUT, 34, 35, E * 4)
    A(f"buffer_load_dwordx2 v[{d}:{d+1}], v{oA}, s[{sTMP}:{sTMP+3}], s72 offen")
    A("s_mov_b32 exec_hi, 0")
    A(f"buffer_load_dword v{d+2}, v{oB}, s[{sTMP}:{sTMP+3}], s72 offen")
    A(f"buffer_load_dword v{sr+2}, v{oB}, s[{sOUT}:{sOUT+3}], s72 offen")
    A("s_mov_b32 exec_hi, -1")
    A(f"buffer_load_dwordx2 v[{sr}:{sr+1}], v{oA}, s[{sOUT}:{sOUT+3}], s72 offen")
    A("L_noload:")
    srd(sTMP, 46, 47, 32768)
    A(f"s_lshl_b32 s{sT}, s{sWave}, 12")
    A(f"s_add_u32 m0, s{sRing}, 4096")
    A("s_nop 0")
    for q in range(4):
        A(f"buffer_load_dwordx4 v{vL16}, s[{sTMP}:{sTMP+3}], s{sT} offen offset:{q*1024} lds")
    srd(sOUT, 44, 45, 4096)
    A(f"s_and_b32 s{sT}, s{sWave}, 3")
    A(f"s_lshl_b32 s{sT}, s{sT}, 10")
    A(f"s_add_u32 m0, s{sRing}, 3072")
    A("s_nop 0")
    A(f"buffer_load_dwordx4 v{vL16}, s[{sOUT}:{sOUT+3}], s{sT} offen lds")
    srd(sTMP, 42, 43, 128)
    A("v_lshlrev_b32 v12, 2, v1")
    A(f"s_add_u32 m0, s{sRing}, 2048")
    A("s_nop 0")
    A(f"buffer_load_dword v12, s[{sTMP}:{sTMP+3}], 0 offen lds")
    srd(sEA, 40, 41, E * 32)
    srd(sSH, 38, 39, E * 8)
    srd(sX, 32, 33, N * 1024)
    srd(sOUT, 48, 49, N * 1024)
    A("v_lshrrev_b32 v12, 2, v0")
    A("v_and_b32 v13, 3, v0")
    A(f"v_lshlrev_b32 v{vEo}, 14, v12")
    A(f"v_lshl_add_u32 v{vEo}, v13, 4, v{vEo}")
    A(f"v_cmp_gt_u32 vcc, {4*G1}, v0")
    A("v_bfrev_b32 v15, 2")
    A(f"v_mul_u32_u24 v{vG}, {CH}, v12")
    A(f"v_cndmask_b32 v{vEo}, v15, v{vEo}, vcc")
    A("s_mov_b64 s[94:95], vcc")
    A(f"s_and_b32 s{sEntO}, s2, 7")
    A(f"s_lshl_b32 s{sEntO}, s{sEntO}, 5")
    A(f"s_lshr_b32 s{sT+1}, s2, 3")
    A(f"s_or_b32 s{sEntO}, s{sEntO}, s{sT+1}")
    A(f"s_lshl_b32 s{sEntO}, s{sEntO}, 6")
    A(f"s_add_u32 s98, s{sEntO}, {PL1}")
    sort_init(True)
    for q in range(D):
        A(f"s_add_u32 s{sSlot+q}, s{sRing}, {q*1024}")
    A(f"s_mul_i32 s{sRecW}, s{sWave}, {CAPW}")
    A(f"s_mov_b32 s101, {SHL}")
    rec_consts()
    A(f"s_mov_b32 s{sM1}, 0x0f0f0f0f\ns_mov_b32 s{sM1+1}, 0x0f0f0f0f")
    A(f"s_mov_b32 s{sM2}, 0xf0f0f0f0\ns_mov_b32 s{sM2+1}, 0xf0f0f0f0")
    A(f"s_mov_b32 s{sMode}, 0")
    A(f"s_mov_b32 s{sRound}, 0")
    A(f"v_bfe_u32 v{vT+8}, v1, 2, 2")
    A(f"v_lshrrev_b32 v12, 4, v1")
    A(f"v_and_b32 v13, 3, v1")
    A(f"v_lshlrev_b32 v{vDMA}, 8, v{vT+8}")
    A(f"v_lshl_add_u32 v{vDMA}, v12, 6, v{vDMA}")
    A(f"v_lshl_add_u32 v{vDMA}, v13, 4, v{vDMA}")
    A(f"v_lshrrev_b32 v14, 5, v1")
    A(f"v_lshl_add_u32 v{vTR}, v14, 8, s{sRing}")
    A(f"v_lshl_add_u32 v{vTR}, v{vT+8}, 6, v{vTR}")
    A(f"v_and_b32 v15, 1, v12")
    A(f"v_lshl_add_u32 v{vTR}, v15, 5, v{vTR}")
    A(f"v_lshl_add_u32 v{vTR}, v13, 3, v{vTR}")
    A(f"v_lshlrev_b32 v{vKh}, 4, v14")
    A(f"v_add_u32 v{vKh}, {EAL}, v{vKh}")
    wave_addrs()
    for r in range(0, 48, 2): A(f"v_mov_b64 v[{ACC+r}:{ACC+r+1}], 0")
    for r in range(0, 8, 2): A(f"v_mov_b64 v[{A1+r}:{A1+r+1}], 0")
    A("v_mov_b32 v12, 0")
    A(f"buffer_load_dword v{vN}, v12, s[{sWS}:{sWS+3}], 0 offen {SC}")
    stamp(1)
    A(f"s_cmp_ge_u32 s2, {G1}")
    A("s_cbranch_scc1 L_helper")
    A(f"v_lshl_or_b32 v{li}, v0, 2, 1")
    A(f"v_lshl_or_b32 v{li+1}, v0, 2, 3")
    A(f"v_lshl_or_b32 v{li+2}, v{li+2}, 1, 1")
    A("s_movk_i32 s74, 40")
    A("s_barrier")
    A("s_waitcnt vmcnt(9)")
    for i in range(3):
        if i == 2: A("s_mov_b32 exec_hi, 0")
        A(f"v_mul_u32_u24 v12, 52429, v{d+i}")
        A("v_lshrrev_b32 v12, 21, v12")
        A("v_and_b32 v13, 7, v12")
        A("v_lshrrev_b32 v14, 3, v12")
        A(f"v_lshl_or_b32 v{bb+i}, v13, 5, v14")
        A(f"v_lshl_add_u32 v13, v{bb+i}, 2, s73")
        A(f"ds_add_rtn_u32 v{rk+i}, v13, v{vOne} offset:{CNT}")
        A(f"v_mul_u32_u24 v12, s74, v12")
        A(f"v_sub_u32 v12, v{d+i}, v12")
        A(f"v_lshl_or_b32 v{li+i}, v12, 12, v{li+i}")
        A(f"v_lshl_add_u32 v{bb+i}, v{bb+i}, 6, s73")
    A("s_mov_b32 exec_hi, -1")
    A("s_waitcnt vmcnt(7)")
    for i in range(3):
        A(f"v_lshl_or_b32 v{li+i}, v{sr+i}, 18, v{li+i}")
    A(f"s_movk_i32 s75, {16384-64}")
    A("s_waitcnt lgkmcnt(0)")
    for i in range(3):
        A(f"v_mul_u32_u24 v12, 43, v{rk+i}")
        A(f"v_lshrrev_b32 v12, 7, v12")
        A(f"v_add_u32 v13, v12, v{rk+i}")
        A(f"v_lshl_add_u32 v{bb+i}, v13, 2, v{bb+i}")
        A(f"v_lshrrev_b32 v12, 2, v12")
        A(f"v_mad_u32_u24 v{bb+i}, v12, s75, v{bb+i}")
        A(f"v_cmp_gt_u32 vcc, 24, v{rk+i}")
        A("s_mov_b64 exec, vcc")
        if i == 2: A("s_mov_b32 exec_hi, 0")
        A(f"ds_write_b32 v{bb+i}, v{li+i}")
        A("s_mov_b64 exec, -1")
    nonce_wait("p", vN, 0)
    srd(sWS, 60, 61, WS_BYTES)
    A(f"v_and_b32 v12, 0x1fc, v0")
    A(f"v_add_u32 v12, s73, v12")
    A("v_lshlrev_b32 v14, 4, v0")
    A(f"s_lshl_b32 s72, s2, 14")
    A("s_waitcnt lgkmcnt(0)")
    A("s_barrier")
    stamp(2)
    for q in range(2):
        A(f"ds_read_b32 v{P+18+q}, v12 offset:{CNT + q*512}")
        A(f"ds_read_b128 v[{P+4*q}:{P+4*q+3}], v{vS16} offset:{q*8192}")
    A(f"s_cmp_eq_u32 s{sNon}, 0")
    A("s_cbranch_scc1 L_nostore")
    for q in range(2):
        A(f"s_waitcnt lgkmcnt({2 - 2*q})")
        A(f"v_cmp_lt_u32 s[{64+2*q}:{65+2*q}], 12, v{P+18+q}")
        A(f"v_cmp_lt_u32 vcc, 24, v{P+18+q}")
        A(f"v_mov_b32 v{P+4*q+3}, s{sNon}")
        A(f"v_cndmask_b32 v13, 0, 1, s[{64+2*q}:{65+2*q}]")
        A(f"v_cndmask_b32 v15, 0, 2, vcc")
        A(f"v_or3_b32 v{P+4*q+3}, v{P+4*q+3}, v13, v15")
        A(f"buffer_store_dwordx4 v[{P+4*q}:{P+4*q+3}], v14, s[{sWS}:{sWS+3}], s72 offen {SC}")
        A("s_add_u32 s72, s72, 8192")
    A(f"s_add_u32 s72, s72, {PL1 - 16384}")
    for q in range(2):
        A(f"s_mov_b64 exec, s[{64+2*q}:{65+2*q}]")
        A(f"s_cbranch_execz L_np{q}")
        A(f"ds_read_b128 v[{P+28+4*q}:{P+31+4*q}], v{vS16} offset:{16384 + q*8192}")
        A("s_waitcnt lgkmcnt(0)")
        A(f"v_mov_b32 v{P+31+4*q}, s{sNon}")
        A(f"buffer_store_dwordx4 v[{P+28+4*q}:{P+31+4*q}], v14, s[{sWS}:{sWS+3}], s72 offen {SC}")
        A(f"L_np{q}:")
        A("s_add_u32 s72, s72, 8192")
    A("s_mov_b64 exec, -1")
    A("L_nostore:")
    A("s_waitcnt lgkmcnt(0)")
    A("s_barrier")
    A("s_branch L_common")
    A("L_helper:")
    nonce_wait("h", vN, 0)
    srd(sWS, 60, 61, WS_BYTES)
    A(f"s_sub_u32 s{sT}, s2, 128")
    A(f"s_cbranch_scc1 L_nopre")
    A(f"s_lshr_b32 s{sT}, s{sT}, 3")
    A(f"s_cmp_ge_u32 s{sT}, 15")
    A(f"s_cbranch_scc1 L_nopre")
    A(f"s_lshl_b32 s{sT}, s{sT}, 16")
    A("v_lshlrev_b32 v12, 7, v0")
    A(f"v_add_u32 v12, s{sT}, v12")
    r = 228
    for (cnt, sd) in ((PRE[0], sSH), (PRE[1], sEA), (PRE[2], sX)):
        for q in range(cnt):
            A(f"s_mov_b32 s{sT}, {q*15*65536}")
            A(f"buffer_load_dword v{r}, v12, s[{sd}:{sd+3}], s{sT} offen"); r += 1
    A("L_nopre:")
    A("s_waitcnt lgkmcnt(0)")
    A("s_barrier")
    stamp(2)
    A("L_common:")
    stamp(3)
    stamp(4)
    if EARLY == 1: ent_load()
    weight_frags()
    stamp(5)
    if EARLY == 0: ent_load()
    stamp(6)
    A(f"s_movk_i32 s{sRem}, {SPIN}")
    A(f"s_cmp_eq_u32 s{sNon}, 0")
    A("s_cbranch_scc1 L_ent_to")
    A("L_ent_chk:")
    A("s_waitcnt vmcnt(0)")
    A(f"v_xor_b32 v{vT}, s{sNon}, v{vE+3}")
    A(f"v_xor_b32 v{vT+1}, s{sNon}, v{vE+7}")
    A(f"v_and_b32 v{vT+2}, 1, v{vT}")
    A(f"v_cmp_lt_u32 vcc, 3, v{vT}")
    A(f"v_cmp_ne_u32 s[96:97], 0, v{vT+2}")
    A(f"v_cmp_ne_u32 s[64:65], 0, v{vT+1}")
    A("s_and_b64 s[64:65], s[64:65], s[96:97]")
    A("s_or_b64 vcc, vcc, s[64:65]")
    A("s_and_b64 vcc, vcc, s[94:95]")
    A("s_cbranch_scc0 L_ent_ok")
    A(f"s_sub_u32 s{sRem}, s{sRem}, 1")
    A("s_cbranch_scc1 L_ent_to")
    if SLEEP: A(f"s_sleep {SLEEP}")
    A("s_mov_b64 exec, vcc")
    ent_load()
    A("s_mov_b64 exec, -1")
    A("s_branch L_ent_chk")
    A("L_ent_to:")
    A("s_waitcnt vmcnt(0)")
    A(f"ds_write_b32 v{vFlag}, v{vOne}")
    for r in range(0, 8, 2): A(f"v_mov_b64 v[{vE+r}:{vE+r+1}], 0")
    A("s_mov_b64 s[96:97], 0")
    A(f"v_mov_b32 v{vT}, 0")
    A("L_ent_ok:")
    if STAMP: A(f"v_writelane_b32 v{vST}, s{sRem}, 21")
    stamp(7)
    A("s_and_b64 s[96:97], s[96:97], s[94:95]")
    A(f"s_or_b32 s{sG2}, s96, s97")
    for i in range(3):
        A(f"v_cndmask_b32 v{vE+4+i}, 0, v{vE+4+i}, s[96:97]")
    A(f"v_and_b32 v{vT}, 2, v{vT}")
    A(f"v_cmp_ne_u32 s[96:97], 0, v{vT}")
    A("s_and_b64 s[96:97], s[96:97], s[94:95]")
    sort_phases(True, "f")
    A("L_sweep:")
    idx_reads(0, 0)
    A("s_waitcnt lgkmcnt(0)")
    for e in range(D + 1):
        A(f"v_readlane_b32 s{sE+e}, v{ENT[0]}, {e}")
    for e in range(D):
        dma_x(e)
    A(f"s_waitcnt vmcnt({D})")
    A("s_barrier")
    A(f"s_sub_u32 s{sRem}, s{sCnt}, 1")
    A("s_cbranch_scc1 L_sweep_done")
    rec_reads()
    A("s_waitcnt lgkmcnt(0)")
    for q in range(4): rw_mfma(q)
    for h in range(2):
        for u in range(4): am_dot(u, h)
    A("s_nop 2")
    am_cvt()
    A(f"s_waitcnt vmcnt({D-1})")
    tr_reads(0)
    A(f"s_waitcnt vmcnt({D-2})")
    tr_reads(1)
    A("s_waitcnt lgkmcnt(2)")
    tp_mfma(0)
    dma_x(D)
    stamp(10)
    A("L_loop:")
    for j in range(16):
        A(f"; ---- step {j}")
        A(f"s_waitcnt vmcnt({VM})")
        tr_reads(j + 2)
        A(f"v_readlane_b32 s{sE + (j + D + 1) % 16}, v{ENT[0]}, {j + D + 1}")
        A(f"s_waitcnt lgkmcnt({5 if j in (1, 4) else 2})")
        if j == 15:
            am_cvt()
            A(f"v_mov_b32 v{ENT[0]}, v{ENT[1]}")
            A("s_nop 0")
        tp_mfma(j + 1)
        dma_x(j + D + 1)
        if j == 0:
            idx_reads(1, 128)
            A(f"v_add_u32 v{vEntA}, 128, v{vEntA}")
            A(f"v_add_u32 v{vRiA}, 128, v{vRiA}")
            A(f"v_add_u32 v{vRiB}, 128, v{vRiB}")
        if j == 3:
            rec_reads()
        if j == 8:
            for u in range(4): am_dot(u, 0)
        if j == 9:
            for u in range(4): am_dot(u, 1)
        fmas(j)
        if j % 4 == 3:
            A(f"s_sub_u32 s{sRem}, s{sRem}, 4")
            A("s_cbranch_scc1 L_sweep_done")
        if j == 15:
            for q in range(4): rw_mfma(q)
            A("s_branch L_loop")
    A("L_sweep_done:")
    A(f"s_cmp_eq_u32 s{sMode}, 0")
    A("s_cbranch_scc1 L_epi")
    A(f"s_add_u32 s{sRound}, s{sRound}, 1")
    A(f"s_cmp_ge_u32 s{sRound}, {E // CAPW}")
    A("s_cbranch_scc1 L_epi")
    A("s_branch L_slowload")
    A("L_goslow:")
    A(f"s_mov_b32 s{sMode}, 1")
    A("L_slowload:")
    A("s_waitcnt vmcnt(0) lgkmcnt(0)")
    A("s_barrier")
    wave_addrs()
    A(f"s_mul_i32 s{sT}, s{sRound}, {CAPW}")
    A(f"v_add_u32 v{vT}, s{sT}, v0")
    A(f"v_lshlrev_b32 v{vT+13}, 2, v{vT}")
    A(f"v_mov_b32 v{vG}, v{vT}")
    srd(sTMP, 36, 37, E * 4)
    A(f"buffer_load_dword v{vT+11}, v{vT+13}, s[{sTMP}:{sTMP+3}], 0 offen")
    srd(sTMP, 34, 35, E * 4)
    A(f"buffer_load_dword v{vT+12}, v{vT+13}, s[{sTMP}:{sTMP+3}], 0 offen")
    sort_init(False)
    rec_consts()
    A(f"s_mul_i32 s{sT}, s2, {NPB}")
    A("s_waitcnt vmcnt(0)")
    A(f"v_subrev_u32 v{vT+11}, s{sT}, v{vT+11}")
    A(f"v_lshl_or_b32 v{vT+12}, v{vT+12}, 18, 1")
    A(f"v_lshl_or_b32 v{vE}, v{vT+11}, 12, v{vT+12}")
    A(f"v_cmp_gt_u32 vcc, {NPB}, v{vT+11}")
    A(f"s_movk_i32 s{sT}, {CAPW}")
    A(f"v_cmp_gt_u32 s[96:97], s{sT}, v0")
    A("s_nop 1")
    A("s_and_b64 vcc, vcc, s[96:97]")
    A("s_nop 1")
    A(f"v_cndmask_b32 v{vE}, 0, v{vE}, vcc")
    A("s_waitcnt lgkmcnt(0)")
    A("s_barrier")
    sort_phases(False, "s")
    A("s_branch L_sweep")
    A("L_epi:")
    stamp(11)
    A(f"s_and_b32 s{sT+1}, s{sWave}, 1")
    A(f"s_lshl_b32 s{sT}, s{sT+1}, 3")
    A(f"s_bfe_u32 s{sT+1}, s{sWave}, 0x10001")
    A(f"s_lshl_b32 s{sT+1}, s{sT+1}, 6")
    A(f"s_add_u32 s{sT}, s{sT}, s{sT+1}")
    A(f"s_add_u32 s{sT}, s{sT}, s{sRing}")
    A(f"v_mul_u32_u24 v15, 48, v1")
    A(f"v_add_u32 v15, s{sT}, v15")
    for k in range(5):
        for H in range(2):
            a = ACC + 8 * k + 4 * H
            t = 64 + (k * 2 + H) * 2
            A(f"v_cvt_pk_bf16_f32 v{t}, v{a}, v{a+1}")
            A(f"v_cvt_pk_bf16_f32 v{t+1}, v{a+2}, v{a+3}")
    A("s_waitcnt vmcnt(0) lgkmcnt(0)")
    for k in range(5):
        for H in range(2):
            t = 64 + (k * 2 + H) * 2
            A(f"ds_write_b64 v15, v[{t}:{t+1}] offset:{H*64*48 + k*8}")
    A(f"v_lshrrev_b32 v7, 4, v1")
    A(f"v_bfe_u32 v8, v1, 2, 2")
    A(f"v_and_b32 v9, 3, v1")
    A(f"v_lshl_add_u32 v11, v7, 3, v8")
    A(f"v_mul_u32_u24 v11, 48, v11")
    A(f"v_lshl_add_u32 v11, v9, 13, v11")
    A(f"v_and_b32 v12, 1, v9")
    A(f"v_lshl_add_u32 v11, v12, 3, v11")
    A(f"v_lshrrev_b32 v12, 1, v9")
    A(f"v_lshl_add_u32 v11, v12, 6, v11")
    A(f"s_bfe_u32 s{sT}, s{sWave}, 0x10001")
    A(f"s_lshr_b32 s{sT+1}, s{sWave}, 2")
    A(f"s_lshl_b32 s40, s{sT}, 15")
    A(f"s_lshl_b32 s41, s{sT+1}, 3")
    A(f"s_add_u32 s40, s40, s41")
    A(f"v_add_u32 v11, s40, v11")
    A(f"s_lshl_b32 s40, s{sT}, 7")
    A(f"s_lshl_b32 s41, s{sT+1}, 2")
    A(f"s_add_u32 s40, s40, s41")
    A(f"s_add_u32 s40, s40, {NODE}")
    A(f"v_lshl_add_u32 v13, v7, 5, s40")
    for u in range(3):
        A(f"ds_read_b32 v{4+u}, v13 offset:{u*8}")
    A(f"v_and_b32 v12, 15, v1")
    A(f"s_and_b32 s41, s{sWave}, 1")
    A(f"s_lshl_b32 s41, s41, 7")
    A(f"v_lshl_add_u32 v12, v12, 3, s41")
    A(f"s_mul_i32 s{sT}, s2, {NPB*1024}")
    A("s_waitcnt lgkmcnt(0)")
    for u in range(3):
        A(f"v_lshl_add_u32 v{4+u}, v{4+u}, 10, v12")
    A("s_barrier")
    stamp(12)
    def breads(u):
        for s in range(4):
            for tt in range(2):
                r = 16 + u * 16 + s * 4 + 2 * tt
                A(f"ds_read_b64_tr_b16 v[{r}:{r+1}], v11 offset:{u*16 + (32*s + 4*tt)*48}")
    def mm(u):
        d = 64 + u * 16
        for s in range(4):
            for a in range(4):
                b = 16 + u * 16 + s * 4
                w = WO + (a * 4 + s) * 4
                c = "0" if s == 0 else f"v[{d+4*a}:{d+4*a+3}]"
                A(f"v_mfma_f32_16x16x32_bf16 v[{d+4*a}:{d+4*a+3}], v[{b}:{b+3}], v[{w}:{w+3}], {c}")
    def fin(u):
        d = 64 + u * 16
        o = 112 + u * 8
        for r in range(4):
            A(f"v_cvt_pk_bf16_f32 v{o+2*r}, v{d+r}, v{d+4+r}")
            A(f"v_cvt_pk_bf16_f32 v{o+2*r+1}, v{d+8+r}, v{d+12+r}")
            A(f"buffer_store_dwordx2 v[{o+2*r}:{o+2*r+1}], v{4+u}, s[{sOUT}:{sOUT+3}], s{sT} offen offset:{r*256} {STFL}")
    breads(0)
    breads(1)
    A("s_waitcnt lgkmcnt(8)")
    mm(0)
    A(f"s_cmp_ge_u32 s{sWave}, 4")
    A("s_cbranch_scc1 L_epi2")
    breads(2)
    A("s_waitcnt lgkmcnt(8)")
    mm(1)
    fin(0)
    A("s_waitcnt lgkmcnt(0)")
    mm(2)
    fin(1)
    A("s_nop 3")
    fin(2)
    A("s_branch L_epi3")
    A("L_epi2:")
    A("s_waitcnt lgkmcnt(0)")
    mm(1)
    fin(0)
    A("s_nop 3")
    fin(1)
    A("L_epi3:")
    if STAMP:
        stamp(13)
        A("s_waitcnt vmcnt(0)")
        stamp(14)
        A(f"v_writelane_b32 v{vST}, s{sCnt}, 20")
        srd(sWS, 60, 61, 0x10000000)
        A(f"s_lshl_b32 s{sT}, s2, 3")
        A(f"s_add_u32 s{sT}, s{sT}, s{sWave}")
        A(f"s_lshl_b32 s{sT}, s{sT}, 8")
        A(f"s_add_u32 s{sT}, s{sT}, 0x8000000")
        A("v_lshlrev_b32 v7, 2, v1")
        A(f"buffer_store_dword v{vST}, v7, s[{sWS}:{sWS+3}], s{sT} offen")
    A("L_main_end:")
    A("s_endpgm")

SLEEP = 0
EARLY = 1
DMASCHED = [[0, 1, 2, 3, 4], [], [], []]
def build(path, stamps=False, VM=5, stfl='sc0 sc1', pre=(2, 0, 0), sc='sc1', sleep=0, sched=None, early=1):
    global L, STAMP, STFL, SC, SLEEP, DMASCHED, EARLY
    EARLY = early
    STAMP, STFL, SC, SLEEP = stamps, stfl, sc, sleep
    DMASCHED = sched or [[0], [1], [2], [3, 4]]
    L = []
    A(f"; @launch grid=({NB},1,1) block=(512,1,1) lds={LDS_MAIN}")
    A('.amdgcn_target "amdgcn-amd-amdhsa--gfx950"')
    A(".text")
    kernel(VM, pre)
    A('.section .rodata,"a"')
    A(".p2align 6")
    A(desc(KN, NVG, 102))
    open(path, "w").write("\n".join(x for x in L if x is not None) + "\n")

if __name__ == "__main__":
    S0 = [[0, 1, 2, 3, 4], [], [], []]
    build("v7.s", sched=S0)
    build("v7a_st.s", stamps=True, sched=S0)
    build("v7b_st.s", stamps=True, sched=S0, early=0)
    build("v7c_st.s", stamps=True, sched=S0, pre=(0, 0, 0))
    build("v7d_st.s", stamps=True, sched=[[0, 1], [], [2, 3, 4], []], early=0)
    build("v7e_st.s", stamps=True, sched=[[], [], [], [0, 1, 2, 3, 4]], early=0)
```

```python
import sys

KN = "gather_scatter__tensor_product_equiv_mace__graph_kernel"
N, E = 10000, 160000
NB, NPB = 250, 40
G1, CH = 125, 1280
PL1 = 0x200000
WS_BYTES = PL1 + G1 * 16384
CAPW = 144
CAPL = 128
D = 8
EAL = 65536
SHL = EAL + 8 * CAPW * 32
LSTRIDE = 160 * 8
LIST = SHL + 8 * CAPW * 8
HIST = LIST + 8 * LSTRIDE
DEG = HIST + 40 * 160
NODE = DEG + 256
FLAG = NODE + 256
WOL = FLAG + 16 + 48
LDS_MAIN = WOL + 32768
PADW = (N << 10) | 40
PADE = 0x00FFFFFF
STG = EAL
CNT = 32768
SPIN = 4000
SC = "sc1"

L = []
def A(s): L.append(s)

STAMP = False
STFL = 'sc0 sc1'
vST = 250
def stamp(n):
    if not STAMP: return
    A("s_memrealtime s[4:5]")
    A("s_waitcnt lgkmcnt(0)")
    A(f"v_writelane_b32 v{vST}, s4, {n}")

def srd(d, lo, hi, nbytes):
    A(f"s_mov_b32 s{d}, s{lo}")
    A(f"s_mov_b32 s{d+1}, s{hi}")
    A(f"s_mov_b32 s{d+2}, {nbytes}")
    A(f"s_mov_b32 s{d+3}, 0x20000")

def desc(name, nvg, nsg):
    return (f".amdhsa_kernel {name}\n  .amdhsa_next_free_vgpr {nvg}\n  .amdhsa_next_free_sgpr {nsg}\n"
            f"  .amdhsa_accum_offset {(nvg+3)//4*4}\n  .amdhsa_group_segment_fixed_size 0\n  .amdhsa_kernarg_size 88\n"
            f"  .amdhsa_user_sgpr_count 2\n  .amdhsa_user_sgpr_kernarg_segment_ptr 1\n  .amdhsa_system_sgpr_workgroup_id_x 1\n"
            f"  .amdhsa_float_denorm_mode_32 3\n.end_amdhsa_kernel")

def dpp_scan(v):
    for sh in (1, 2, 4, 8):
        A("s_nop 1")
        A(f"v_add_u32_dpp v{v}, v{v}, v{v} row_shr:{sh} row_mask:0xf bank_mask:0xf bound_ctrl:0")
    A("s_nop 1")
    A(f"v_add_u32_dpp v{v}, v{v}, v{v} row_bcast:15 row_mask:0xa bank_mask:0xf")
    A("s_nop 1")
    A(f"v_add_u32_dpp v{v}, v{v}, v{v} row_bcast:31 row_mask:0xc bank_mask:0xf")

ACC = 16
RW = 64
WR = 96
A1, A2 = 112, 116
CG = 120
SHV = 128
AMF = 130
AM = 134
XB = [136, 140]
TP = [144, 152]
ENT = [160, 161]
vRA, vRB = 162, 163
WO = 164
NVG = 252
vDMA, vTR, vEntA, vRiA, vRiB, vKh = 2, 3, 4, 5, 6, 7
sX, sEA, sSH, sWS, sOUT, sTMP = 8, 12, 16, 20, 24, 28
sWave, sRing, sRem, sCnt, sRound, sMode, sNw, sG2, sRecW = 3, 52, 53, 54, 55, 56, 57, 58, 59
sEaW, sShW = 76, 77
sE = 64
sT = 80
sM1, sM2 = 82, 84
sSlot = 86
sNon, sTg = 6, 98
sEntO = 7
vE, vKey, vRank = 64, 72, 80
vB = [88, 89]
vG = 90
vP3, vP3o = 91, 92
vEo = 93
vFl = 94
vT = 128
vHist, vFlag, vOne, v64 = 8, 9, 10, 11
SREC = 228
def smask(i): return 64 + 2 * i

def grp(g, body, tag):
    if g == 1:
        A(f"s_cmp_eq_u32 s{sG2}, 0")
        A(f"s_cbranch_scc1 L_{tag}")
    body()
    if g == 1:
        A(f"L_{tag}:")

def sort_init(first):
    A(f"v_mov_b64 v[{vT}:{vT+1}], 0")
    A(f"v_mov_b64 v[{vT+2}:{vT+3}], 0")
    A(f"v_min_u32 v{vT+6}, 399, v0")
    A(f"v_lshlrev_b32 v{vT+6}, 4, v{vT+6}")
    A(f"v_add_u32 v{vT+6}, {HIST}, v{vT+6}")
    A(f"ds_write_b128 v{vT+6}, v[{vT}:{vT+3}]")
    A(f"v_lshlrev_b32 v{vT+5}, 2, v1")
    if first:
        A(f"v_add_u32 v{vT+7}, {DEG}, v{vT+5}")
        A(f"ds_write_b32 v{vT+7}, v1")
    A(f"v_mov_b32 v{vT+4}, {PADE}")
    A(f"v_add_u32 v{vT+5}, s{sRing}, v{vT+5}")
    for q in range(3):
        A(f"ds_write_b32 v{vT+5}, v{vT+4} offset:{q*256}")
    A(f"v_mov_b32 v{vT+8}, {PADW}")
    A(f"v_mov_b32 v{vT+9}, 0")
    A(f"v_mov_b64 v[{vT+10}:{vT+11}], v[{vT+8}:{vT+9}]")
    A(f"v_lshlrev_b32 v{vT+7}, 4, v0")
    A(f"v_add_u32 v{vT+7}, {LIST}, v{vT+7}")
    A(f"ds_write_b128 v{vT+7}, v[{vT+8}:{vT+11}]")
    A(f"ds_write_b128 v{vT+7}, v[{vT+8}:{vT+11}] offset:2048")
    A(f"v_mov_b32 v{v64}, 64")

def ents(g, first):
    return [4 * g + i for i in range(3)] if first else [0]

def mk(i):
    return 64 + 2 * ((i // 4) * 3 + i % 4)

def rec_dma(m, tag):
    A(f"s_cmp_le_u32 s{sNw}, {32*m}")
    A(f"s_cbranch_scc1 L_rd_{tag}{m}")
    if m == 4: A("s_mov_b32 exec_hi, 0")
    A(f"v_lshl_add_u32 v{vT+26}, v{vT+16+m}, 5, v{vP3}")
    A(f"v_lshl_add_u32 v{vT+27}, v{vT+16+m}, 3, v{vP3o}")
    A(f"s_add_u32 m0, s{sEaW}, {m*1024}")
    A("s_nop 0")
    A(f"buffer_load_dwordx4 v{vT+26}, s[{sEA}:{sEA+3}], 0 offen lds")
    A(f"s_add_u32 m0, s{sShW}, {m*256}")
    A("s_nop 0")
    A(f"buffer_load_dword v{vT+27}, s[{sSH}:{sSH+3}], 0 offen lds")
    if m == 4: A("s_mov_b32 exec_hi, -1")
    A(f"L_rd_{tag}{m}:")

def sort_phases(first, tag):
    ngrp = 2 if first else 1
    sched = DMASCHED if first else [[0], [], [], []]
    A(f"s_mov_b32 s{sNw}, 0")
    def p1a(g):
        ids = ents(g, first)
        for i in ids:
            A(f"v_and_b32 v{vT}, 1, v{vE+i}")
            A(f"v_cmp_ne_u32 s[{mk(i)}:{mk(i)+1}], 0, v{vT}")
            A(f"v_bfe_u32 v{vT+2+i%4}, v{vE+i}, 1, 11")
            A(f"v_add_u32 v{vT+2+i%4}, v{vT+2+i%4}, v{vG}")
        A(f"v_mov_b32 v{vB[g]}, s{sNw}")
        for i in ids:
            A(f"v_mbcnt_lo_u32_b32 v{vB[g]}, s{mk(i)}, v{vB[g]}")
            A(f"v_mbcnt_hi_u32_b32 v{vB[g]}, s{mk(i)+1}, v{vB[g]}")
            A(f"s_bcnt1_i32_b64 s{sT}, s[{mk(i)}:{mk(i)+1}]")
            A(f"s_add_u32 s{sNw}, s{sNw}, s{sT}")
        A(f"v_lshl_add_u32 v{vT+1}, v{vB[g]}, 2, s{sRing}")
        for i in ids:
            A(f"s_mov_b64 exec, s[{mk(i)}:{mk(i)+1}]")
            A(f"ds_write_b32 v{vT+1}, v{vT+2+i%4} offset:{4*(i%4)}")
        A("s_mov_b64 exec, -1")
    def p1b(g):
        ids = ents(g, first)
        for i in ids:
            A(f"v_bfe_u32 v{vT+8+i}, v{vE+i}, 12, 6")
            A(f"v_lshrrev_b32 v{vKey+i}, 26, v{vE+i}")
            A(f"v_mad_u32_u24 v{vKey+i}, v{vT+8+i}, 40, v{vKey+i}")
            A(f"v_lshl_add_u32 v{vKey+i}, v{vKey+i}, 2, s{sT+1}")
            A(f"v_lshl_add_u32 v{vT+8+i}, v{vT+8+i}, 2, s{sT+1}")
        for i in ids:
            A(f"s_mov_b64 exec, s[{mk(i)}:{mk(i)+1}]")
            if first: A(f"ds_add_u32 v{vT+8+i}, v{v64} offset:{DEG-HIST}")
            A(f"ds_add_rtn_u32 v{vRank+i}, v{vKey+i}, v{vOne}")
        A("s_mov_b64 exec, -1")
        A(f"v_add_u32 v{vB[g]}, s{sRecW}, v{vB[g]}")
    for g in range(ngrp): grp(g, lambda: p1a(g), f"p1a_{tag}")
    for m in range(5 if first else 2):
        A(f"ds_read_b32 v{vT+16+m}, v{vFl} offset:{m*128}")
    A(f"s_mov_b32 s{sT+1}, {HIST}")
    for g in range(ngrp): grp(g, lambda: p1b(g), f"p1b_{tag}")
    if first:
        A(f"s_cmp_gt_u32 s{sNw}, {CAPW}")
        A("s_cselect_b64 s[96:97], -1, s[96:97]")
        A("s_mov_b64 exec, s[96:97]")
        A(f"ds_write_b32 v{vFlag}, v{vOne}")
        A("s_mov_b64 exec, -1")
        A("s_waitcnt lgkmcnt(7)")
        for m in sched[0]: rec_dma(m, tag)
    else:
        A("s_waitcnt lgkmcnt(0)")
        rec_dma(0, tag); rec_dma(1, tag)
    A("s_waitcnt lgkmcnt(0)")
    A("s_barrier")
    if first: stamp(8)
    A(f"v_lshlrev_b32 v{vT}, 2, v1")
    A(f"v_add_u32 v{vT}, {HIST}, v{vT}")
    if first:
        A(f"ds_read_b32 v{vT+1}, v{vT} offset:{DEG-HIST}")
        A(f"s_mul_i32 s{sT+1}, s{sWave}, 5")
        A(f"v_add_u32 v{vT+3}, s{sT+1}, v1")
        A("s_mov_b32 exec_hi, 0xff")
        A("s_waitcnt lgkmcnt(0)")
        for k in range(5):
            A(f"v_readlane_b32 s{40+k}, v{vT+1}, s{sT+1}")
            A(f"s_add_u32 s{sT+1}, s{sT+1}, 1")
        for k in range(5):
            A(f"v_cmp_lt_u32 vcc, s{40+k}, v{vT+1}")
            A(f"s_bcnt1_i32_b64 s{40+k}, vcc")
        for k in range(5):
            A(f"v_writelane_b32 v{vT+2}, s{40+k}, {k}")
        A("s_mov_b64 exec, 0x1f")
        A(f"v_lshrrev_b32 v{vT+4}, 3, v{vT+2}")
        A(f"v_lshlrev_b32 v{vT+5}, 2, v{vT+4}")
        A(f"s_mov_b32 s40, {PATTERN}")
        A(f"v_lshrrev_b32 v{vT+5}, v{vT+5}, s40")
        A(f"v_xor_b32 v{vT+2}, v{vT+2}, v{vT+5}")
        A(f"v_and_b32 v{vT+2}, 7, v{vT+2}")
        A(f"v_lshl_add_u32 v{vT+2}, v{vT+2}, 3, v{vT+4}")
        A(f"v_lshlrev_b32 v{vT+2}, 2, v{vT+2}")
        A(f"v_add_u32 v{vT+2}, {NODE}, v{vT+2}")
        A(f"ds_write_b32 v{vT+2}, v{vT+3}")
        A("s_mov_b64 exec, -1")
        for m in sched[1]: rec_dma(m, tag)
        A("s_waitcnt lgkmcnt(0)")
        A("s_barrier")
    A(f"s_lshl_b32 s{sT}, s{sWave}, 5")
    A(f"s_add_u32 s{sT}, s{sT}, {NODE}")
    A(f"v_mov_b32 v{vT+1}, s{sT}")
    A(f"ds_read_b128 v[{vT+4}:{vT+7}], v{vT+1}")
    A(f"ds_read_b32 v{vT+8}, v{vT+1} offset:16")
    A("s_waitcnt lgkmcnt(0)")
    A(f"s_movk_i32 s{sT}, 160")
    for k in range(5):
        A(f"v_mad_u32_u24 v{vT+4+k}, v{vT+4+k}, s{sT}, v{vT}")
        A(f"ds_read_b32 v{vT+10+k}, v{vT+4+k}")
    A(f"s_mul_i32 s{sT}, s{sWave}, {LSTRIDE//8}")
    A(f"s_add_u32 s{sT}, s{sT}, {LIST//8}")
    A("s_waitcnt lgkmcnt(0)")
    A(f"v_add3_u32 v{vT}, v{vT+10}, v{vT+11}, v{vT+12}")
    A(f"v_add3_u32 v{vT}, v{vT}, v{vT+13}, v{vT+14}")
    A(f"v_mov_b32 v{vT+1}, v{vT}")
    dpp_scan(vT + 1)
    A("s_nop 0")
    A(f"v_readlane_b32 s{sCnt}, v{vT+1}, 39")
    A(f"v_sub_u32 v{vT+1}, v{vT+1}, v{vT}")
    A(f"v_add_u32 v{vT+1}, s{sT}, v{vT+1}")
    A(f"s_mov_b32 s{sT}, 0x1000000")
    A("s_mov_b32 exec_hi, 0xff")
    for k in range(5):
        A(f"ds_write_b32 v{vT+4+k}, v{vT+1}")
        if k < 4: A(f"v_add3_u32 v{vT+1}, v{vT+1}, v{vT+10+k}, s{sT}")
    A("s_mov_b32 exec_hi, -1")
    if first:
        A(f"s_cmp_le_u32 s{sCnt}, {CAPL}")
        A(f"s_cbranch_scc1 L_nof_{tag}")
        A(f"ds_write_b32 v{vFlag}, v{vOne}")
        A(f"L_nof_{tag}:")
        for m in sched[2]: rec_dma(m, tag)
    A("s_waitcnt lgkmcnt(0)")
    A("s_barrier")
    if first: stamp(9)
    if first:
        A(f"ds_read_b32 v{vT+28}, v{vFlag}")
    def p3a(g):
        ids = ents(g, first)
        for i in ids:
            A(f"ds_read_b32 v{vKey+i}, v{vKey+i}")
        for i in ids:
            A(f"v_lshrrev_b32 v{vT+2*i}, 18, v{vE+i}")
            A(f"v_lshlrev_b32 v{vT+2*i}, 10, v{vT+2*i}")
            A(f"v_add_u32 v{vT+2*i+1}, {i%4}, v{vB[g]}")
    for g in range(ngrp): grp(g, lambda: p3a(g), f"p3a_{tag}")
    A("s_waitcnt lgkmcnt(0)")
    if first:
        A(f"v_readfirstlane_b32 s{sT}, v{vT+28}")
        A(f"s_cmp_lg_u32 s{sT}, 0")
        A("s_cbranch_scc1 L_goslow")
    def p3b(g):
        ids = ents(g, first)
        for i in ids:
            A(f"v_lshrrev_b32 v{vT+29}, 21, v{vKey+i}")
            A(f"v_or_b32 v{vT+2*i}, v{vT+2*i}, v{vT+29}")
            A(f"v_and_b32 v{vKey+i}, 0xffffff, v{vKey+i}")
            A(f"v_add_lshl_u32 v{vKey+i}, v{vRank+i}, v{vKey+i}, 3")
        for i in ids:
            A(f"s_mov_b64 exec, s[{mk(i)}:{mk(i)+1}]")
            A(f"ds_write_b64 v{vKey+i}, v[{vT+2*i}:{vT+2*i+1}]")
        A("s_mov_b64 exec, -1")
    for g in range(ngrp): grp(g, lambda: p3b(g), f"p3b_{tag}")
    if first:
        for m in sched[3]: rec_dma(m, tag)
        small_frags()
    A("s_waitcnt lgkmcnt(0)")
    A("s_barrier")

def idx_reads(p, off):
    A(f"ds_read_b32 v{ENT[p]}, v{vEntA} offset:{off}")
    A(f"ds_read_b32 v{vRA}, v{vRiA} offset:{off}")
    A(f"ds_read_b32 v{vRB}, v{vRiB} offset:{off}")

def rec_reads():
    A(f"v_lshl_add_u32 v{vRA}, v{vRA}, 5, v{vKh}")
    A(f"v_lshl_add_u32 v{vRB}, v{vRB}, 3, s101")
    A(f"ds_read_b64 v[{SHV}:{SHV+1}], v{vRB}")
    A(f"s_mov_b64 exec, s[{sM1}:{sM1+1}]")
    A(f"ds_read_b128 v[{A1}:{A1+3}], v{vRA}")
    A(f"s_mov_b64 exec, s[{sM2}:{sM2+1}]")
    A(f"ds_read_b128 v[{A2}:{A2+3}], v{vRA}")
    A("s_mov_b64 exec, -1")

def rw_mfma(q):
    H, hf = q >> 1, q & 1
    d = RW + 16 * H
    a = A1 if hf == 0 else A2
    b = WR + (H * 2 + hf) * 4
    c = "0" if hf == 0 else f"v[{d}:{d+15}]"
    A(f"v_mfma_f32_32x32x16_bf16 v[{d}:{d+15}], v[{a}:{a+3}], v[{b}:{b+3}], {c}")

def am_dot(u, half):
    if half == 0:
        A(f"v_dot2_f32_bf16 v{AMF+u}, v{SHV}, v{CG+2*u}, 0")
    else:
        A(f"v_dot2_f32_bf16 v{AMF+u}, v{SHV+1}, v{CG+2*u+1}, v{AMF+u}")

def am_cvt():
    A(f"v_cvt_pk_bf16_f32 v{AM}, v{AMF}, v{AMF+1}")
    A(f"v_cvt_pk_bf16_f32 v{AM+1}, v{AMF+2}, v{AMF+3}")

def tr_reads(e):
    xb = XB[e % 2]
    A(f"ds_read_b64_tr_b16 v[{xb}:{xb+1}], v{vTR} offset:{(e % D)*1024}")
    A(f"ds_read_b64_tr_b16 v[{xb+2}:{xb+3}], v{vTR} offset:{(e % D)*1024+512}")

def tp_mfma(e):
    xb, tp = XB[e % 2], TP[e % 2]
    A(f"v_mfma_f32_4x4x4_16b_bf16 v[{tp}:{tp+3}], v[{AM}:{AM+1}], v[{xb}:{xb+1}], 0 cbsz:4 abid:{e % 16}")
    A(f"v_mfma_f32_4x4x4_16b_bf16 v[{tp+4}:{tp+7}], v[{AM}:{AM+1}], v[{xb+2}:{xb+3}], 0 cbsz:4 abid:{e % 16}")

def dma_x(e):
    A(f"s_mov_b32 m0, s{sSlot + e % D}")
    A(f"s_and_b32 s{sT}, s{sE + e % 16}, 0xfffffc00")
    A(f"buffer_load_dwordx4 v{vDMA}, s[{sX}:{sX+3}], s{sT} offen lds")

def fmas(e):
    tp = TP[e % 2]
    A(f"s_set_gpr_idx_on s{sE + e % 16}, gpr_idx(SRC2,DST)")
    for H in range(2):
        rw = RW + 16 * H + e % 16
        for w in range(4):
            A(f"v_fmac_f32 v{ACC + 4*H + w}, v{tp + 4*H + w}, v{rw}")
    A("s_set_gpr_idx_off")

def wave_addrs():
    A(f"s_mul_i32 s{sT}, s{sWave}, {LSTRIDE}")
    A(f"s_add_u32 s{sT}, s{sT}, {LIST}")
    A(f"v_lshl_add_u32 v{vEntA}, v1, 3, s{sT}")
    A(f"s_add_u32 s{sT}, s{sT}, 4")
    A(f"v_lshrrev_b32 v{vRiB}, 2, v1")
    A(f"v_lshl_add_u32 v{vRiB}, v{vRiB}, 3, s{sT}")
    A(f"v_bfe_u32 v12, v1, 3, 2")
    A(f"v_and_b32 v13, 3, v1")
    A(f"v_lshl_add_u32 v12, v12, 2, v13")
    A(f"v_lshl_add_u32 v{vRiA}, v12, 3, s{sT}")

def wo_convert():
    t = WO
    o = WO + 32
    A(f"s_cmp_ge_u32 s{sWave}, 4")
    A("s_cbranch_scc1 L_nocv")
    A(f"s_cmp_lg_u32 s{sRound}, 0")
    A("s_cbranch_scc1 L_nocv")
    A(f"s_add_u32 s40, s{sRing}, {WOL}")
    A(f"v_lshrrev_b32 v12, 4, v1")
    A(f"v_and_b32 v13, 15, v1")
    A(f"v_lshl_add_u32 v15, v12, 11, s40")
    A(f"v_lshl_add_u32 v15, v13, 3, v15")
    for i in range(8):
        A(f"ds_read2_b64 v[{t+4*i}:{t+4*i+3}], v15 offset0:{i*32} offset1:{i*32+16}")
    A(f"v_lshl_add_u32 v15, v1, 4, s40")
    A("s_mov_b32 s40, 0x05040100")
    A("s_mov_b32 s41, 0x07060302")
    A("s_waitcnt lgkmcnt(0)")
    for a in range(8):
        for j in range(4):
            r = t + 8 * j + (a >> 1)
            A(f"v_perm_b32 v{o + a*4 + j}, v{r+4}, v{r}, s{40 + (a & 1)}")
        A(f"ds_write_b128 v15, v[{o+a*4}:{o+a*4+3}] offset:{a*1024}")
    A("L_nocv:")

def wreg(f):
    return WO + 4 * f if f < 16 else 64 + 4 * (f - 16)

def wo_read(lo, hi, va):
    for f in range(lo, hi):
        A(f"ds_read_b128 v[{wreg(f)}:{wreg(f)+3}], v{va} offset:{(f % 4)*8192 + (f // 4)*1024}")

def small_frags():
    t = WO
    A(f"v_lshrrev_b32 v13, 5, v1")
    A(f"v_bfe_u32 v14, v1, 4, 1")
    A(f"v_lshlrev_b32 v13, 14, v13")
    A(f"v_lshl_add_u32 v13, v14, 5, v13")
    A(f"v_bfe_u32 v12, v1, 2, 2")
    A(f"v_lshl_add_u32 v13, v12, 8, v13")
    A(f"v_and_b32 v12, 3, v1")
    A(f"v_lshl_add_u32 v13, v12, 3, v13")
    A(f"v_lshl_add_u32 v14, v12, 1, s{sRing}")
    for i in range(16):
        if i == 12: A("s_waitcnt lgkmcnt(4)")
        A(f"ds_read_u16 v{t+i}, v14 offset:{2048 + i*8}")
    A("s_waitcnt lgkmcnt(4)")
    for H in range(2):
        for hf in range(2):
            for tt in range(2):
                r = WR + (H * 2 + hf) * 4 + 2 * tt
                A(f"ds_read_b64_tr_b16 v[{r}:{r+1}], v13 offset:{32768 + 3072 + tt*8192 + H*128 + hf*64}")
    A("s_waitcnt lgkmcnt(8)")
    for q in range(8):
        A(f"v_lshl_or_b32 v{CG+q}, v{t+2*q+1}, 16, v{t+2*q}")
    A("s_waitcnt lgkmcnt(0)")

def weight_dma(tag, vL16):
    A(f"s_cmp_ge_u32 s{sWave}, 4")
    A(f"s_cbranch_scc1 L_wr{tag}")
    srd(sTMP, 46, 47, 32768)
    for h in range(2):
        A(f"s_add_u32 s{sT}, s{sRing}, {h*4096}")
        A(f"s_add_u32 m0, s{sT}, {WOL}")
        A("s_nop 0")
        for q in range(4):
            A(f"buffer_load_dwordx4 v{vL16}, s[{sTMP}:{sTMP+3}], s{sT} offen offset:{q*1024} lds")
    A(f"s_branch L_cg{tag}")
    A(f"L_wr{tag}:")
    srd(sTMP, 44, 45, 4096)
    A(f"s_and_b32 s{sT}, s{sWave}, 3")
    A(f"s_lshl_b32 s{sT}, s{sT}, 10")
    A(f"s_add_u32 m0, s{sRing}, 3072")
    A("s_nop 0")
    A(f"buffer_load_dwordx4 v{vL16}, s[{sTMP}:{sTMP+3}], s{sT} offen lds")
    A(f"L_cg{tag}:")
    srd(sTMP, 42, 43, 128)
    A("v_lshlrev_b32 v12, 2, v1")
    A(f"s_add_u32 m0, s{sRing}, 2048")
    A("s_nop 0")
    A(f"buffer_load_dword v12, s[{sTMP}:{sTMP+3}], 0 offen lds")

def ent_load(both=True):
    A(f"buffer_load_dwordx4 v[{vE}:{vE+3}], v{vEo}, s[{sWS}:{sWS+3}], s{sEntO} offen {SC}")
    if both: A(f"buffer_load_dwordx4 v[{vE+4}:{vE+7}], v{vEo}, s[{sWS}:{sWS+3}], s98 offen {SC}")

def rec_consts():
    A(f"s_mul_i32 s{sEaW}, s{sWave}, {CAPW*32}")
    A(f"s_add_u32 s{sEaW}, s{sEaW}, {EAL}")
    A(f"s_mul_i32 s{sShW}, s{sWave}, {CAPW*8}")
    A(f"s_add_u32 s{sShW}, s{sShW}, {SHL}")
    A(f"v_and_b32 v{vP3o}, 1, v1")
    A(f"v_lshlrev_b32 v{vP3}, 4, v{vP3o}")
    A(f"v_lshlrev_b32 v{vP3o}, 2, v{vP3o}")
    A(f"v_lshrrev_b32 v{vFl}, 1, v1")
    A(f"v_lshl_add_u32 v{vFl}, v{vFl}, 2, s{sRing}")

def nonce_wait(tag, vN, first_cnt, sd=sWS):
    A(f"s_movk_i32 s{sRem}, {SPIN}")
    A("v_mov_b32 v12, 0")
    A(f"s_waitcnt vmcnt({first_cnt})")
    A(f"s_branch L_non1{tag}")
    A(f"L_non{tag}:")
    A("s_waitcnt vmcnt(0)")
    A(f"L_non1{tag}:")
    A(f"v_readfirstlane_b32 s{sNon}, v{vN}")
    A(f"s_cmp_lg_u32 s{sNon}, 0")
    A(f"s_cbranch_scc1 L_non_ok{tag}")
    A(f"s_sub_u32 s{sRem}, s{sRem}, 1")
    A(f"s_cbranch_scc1 L_non_ok{tag}")
    A(f"buffer_load_dword v{vN}, v12, s[{sd}:{sd+3}], 0 offen {SC}")
    A(f"s_branch L_non{tag}")
    A(f"L_non_ok{tag}:")

def kernel(VM, PRE):
    A(f".globl {KN}\n.p2align 8\n.type {KN},@function\n{KN}:")
    A(f"s_cmp_ge_u32 s2, {NB}")
    A("s_cbranch_scc1 L_main_end")
    stamp(0)
    A("s_load_dwordx16 s[32:47], s[0:1], 0")
    A("s_load_dwordx4 s[48:51], s[0:1], 64")
    A("s_load_dwordx2 s[60:61], s[0:1], 80")
    A("s_memrealtime s[62:63]")
    A("v_lshrrev_b32 v11, 6, v0")
    A("v_and_b32 v1, 63, v0")
    A(f"v_readfirstlane_b32 s{sWave}, v11")
    P = WO
    vN, vL16 = 238, P + 41
    d, sr, li = P, P + 4, P + 8
    oA, oB, vS64, vS4, vS16 = range(P + 12, P + 17)
    bb, rk = P + 20, P + 24
    A(f"v_lshlrev_b32 v{vL16}, 4, v1")
    A(f"v_mov_b64 v[{vT}:{vT+1}], 0")
    A(f"v_mov_b64 v[{vT+2}:{vT+3}], 0")
    A(f"v_mov_b32 v{vFlag}, {FLAG}")
    A(f"ds_write_b32 v{vFlag}, v{vT}")
    A(f"s_lshl_b32 s{sRing}, s{sWave}, 13")
    A(f"s_mul_i32 s72, s2, {CH*4}")
    A(f"v_lshlrev_b32 v{oA}, 3, v0")
    A(f"s_lshl_b32 s{sT}, s{sWave}, 5")
    A(f"s_add_u32 s{sT}, s{sT}, 1024")
    A(f"v_add_u32 v{li+2}, s{sT}, v1")
    A(f"v_lshlrev_b32 v{oB}, 2, v{li+2}")
    A(f"s_mov_b32 s73, {STG}")
    A(f"v_lshl_add_u32 v{vS16}, v0, 4, s73")
    A(f"v_lshl_add_u32 v{vS4}, v0, 2, s73")
    for q in range(4):
        A(f"ds_write_b128 v{vS16}, v[{vT}:{vT+3}] offset:{q*8192}")
    A(f"ds_write_b32 v{vS4}, v{vT} offset:{CNT}")
    A("s_waitcnt lgkmcnt(0)")
    srd(sWS, 50, 51, 256)
    A(f"s_cmp_ge_u32 s2, {G1}")
    A("s_cbranch_scc1 L_noload")
    A(f"s_or_b32 s{sT}, s2, s{sWave}")
    A("s_cbranch_scc1 L_nopub")
    A("s_lshl_b32 s62, s62, 2")
    A("s_or_b32 s62, s62, 0x80000000")
    A("v_mov_b32 v12, s62")
    A("v_mov_b32 v13, 0")
    A("s_mov_b64 exec, 1")
    A(f"buffer_store_dword v12, v13, s[{sWS}:{sWS+3}], 0 offen {SC}")
    A("s_mov_b64 exec, -1")
    A("L_nopub:")
    srd(sTMP, 36, 37, E * 4)
    srd(sOUT, 34, 35, E * 4)
    A(f"buffer_load_dwordx2 v[{d}:{d+1}], v{oA}, s[{sTMP}:{sTMP+3}], s72 offen")
    A("s_mov_b32 exec_hi, 0")
    A(f"buffer_load_dword v{d+2}, v{oB}, s[{sTMP}:{sTMP+3}], s72 offen")
    A(f"buffer_load_dword v{sr+2}, v{oB}, s[{sOUT}:{sOUT+3}], s72 offen")
    A("s_mov_b32 exec_hi, -1")
    A(f"buffer_load_dwordx2 v[{sr}:{sr+1}], v{oA}, s[{sOUT}:{sOUT+3}], s72 offen")
    A("L_noload:")
    srd(sEA, 40, 41, E * 32)
    srd(sSH, 38, 39, E * 8)
    srd(sX, 32, 33, N * 1024)
    A(f"v_mov_b32 v{vOne}, 1")
    stamp(1)
    A(f"s_cmp_ge_u32 s2, {G1}")
    A("s_cbranch_scc1 L_helper")
    A(f"v_lshl_or_b32 v{li}, v0, 2, 1")
    A(f"v_lshl_or_b32 v{li+1}, v0, 2, 3")
    A(f"v_lshl_or_b32 v{li+2}, v{li+2}, 1, 1")
    A("s_movk_i32 s74, 40")
    A("s_barrier")
    A("v_mov_b32 v12, 0")
    A(f"buffer_load_dword v{vN+1}, v12, s[{sWS}:{sWS+3}], 0 offen {SC}")
    A("s_waitcnt vmcnt(3)")
    A(f"buffer_load_dword v{vN}, v12, s[{sWS}:{sWS+3}], 0 offen {SC}")
    for i in range(3):
        if i == 2: A("s_mov_b32 exec_hi, 0")
        A(f"v_mul_u32_u24 v12, 52429, v{d+i}")
        A("v_lshrrev_b32 v12, 21, v12")
        A("v_and_b32 v13, 7, v12")
        A("v_lshrrev_b32 v14, 3, v12")
        A(f"v_lshl_or_b32 v{bb+i}, v13, 5, v14")
        A(f"v_lshl_add_u32 v13, v{bb+i}, 2, s73")
        A(f"ds_add_rtn_u32 v{rk+i}, v13, v{vOne} offset:{CNT}")
        A(f"v_mul_u32_u24 v12, s74, v12")
        A(f"v_sub_u32 v12, v{d+i}, v12")
        A(f"v_lshl_or_b32 v{li+i}, v12, 12, v{li+i}")
        A(f"v_lshl_add_u32 v{bb+i}, v{bb+i}, 6, s73")
    A("s_mov_b32 exec_hi, -1")
    A("s_waitcnt vmcnt(1)")
    A(f"v_readfirstlane_b32 s{sNon}, v{vN+1}")
    for i in range(3):
        A(f"v_lshl_or_b32 v{li+i}, v{sr+i}, 18, v{li+i}")
    A(f"s_movk_i32 s75, {16384-64}")
    A("s_waitcnt lgkmcnt(0)")
    for i in range(3):
        A(f"v_mul_u32_u24 v12, 43, v{rk+i}")
        A(f"v_lshrrev_b32 v12, 7, v12")
        A(f"v_add_u32 v13, v12, v{rk+i}")
        A(f"v_lshl_add_u32 v{bb+i}, v13, 2, v{bb+i}")
        A(f"v_lshrrev_b32 v12, 2, v12")
        A(f"v_mad_u32_u24 v{bb+i}, v12, s75, v{bb+i}")
        A(f"v_cmp_gt_u32 vcc, 24, v{rk+i}")
        A("s_mov_b64 exec, vcc")
        if i == 2: A("s_mov_b32 exec_hi, 0")
        A(f"ds_write_b32 v{bb+i}, v{li+i}")
        A("s_mov_b64 exec, -1")
    A(f"s_cmp_lg_u32 s{sNon}, 0")
    A("s_cbranch_scc1 L_non_okp")
    nonce_wait("p", vN, 0)
    srd(sWS, 60, 61, WS_BYTES)
    A(f"v_and_b32 v12, 0x1fc, v0")
    A(f"v_add_u32 v12, s73, v12")
    A("v_lshlrev_b32 v14, 4, v0")
    A(f"s_lshl_b32 s72, s2, 14")
    A("s_waitcnt lgkmcnt(0)")
    A("s_barrier")
    stamp(2)
    for q in range(2):
        A(f"ds_read_b32 v{P+18+q}, v12 offset:{CNT + q*512}")
        A(f"ds_read_b128 v[{P+4*q}:{P+4*q+3}], v{vS16} offset:{q*8192}")
    A(f"s_cmp_eq_u32 s{sNon}, 0")
    A("s_cbranch_scc1 L_nostore")
    for q in range(2):
        A(f"s_waitcnt lgkmcnt({2 - 2*q})")
        A(f"v_cmp_lt_u32 s[{64+2*q}:{65+2*q}], 12, v{P+18+q}")
        A(f"v_cmp_lt_u32 vcc, 24, v{P+18+q}")
        A(f"v_mov_b32 v{P+4*q+3}, s{sNon}")
        A(f"v_cndmask_b32 v13, 0, 1, s[{64+2*q}:{65+2*q}]")
        A(f"v_cndmask_b32 v15, 0, 2, vcc")
        A(f"v_or3_b32 v{P+4*q+3}, v{P+4*q+3}, v13, v15")
        A(f"buffer_store_dwordx4 v[{P+4*q}:{P+4*q+3}], v14, s[{sWS}:{sWS+3}], s72 offen {SC}")
        A("s_add_u32 s72, s72, 8192")
    A(f"s_add_u32 s72, s72, {PL1 - 16384}")
    for q in range(2):
        A(f"s_mov_b64 exec, s[{64+2*q}:{65+2*q}]")
        A(f"s_cbranch_execz L_np{q}")
        A(f"ds_read_b128 v[{P+28+4*q}:{P+31+4*q}], v{vS16} offset:{16384 + q*8192}")
        A("s_waitcnt lgkmcnt(0)")
        A(f"v_mov_b32 v{P+31+4*q}, s{sNon}")
        A(f"buffer_store_dwordx4 v[{P+28+4*q}:{P+31+4*q}], v14, s[{sWS}:{sWS+3}], s72 offen {SC}")
        A(f"L_np{q}:")
        A("s_add_u32 s72, s72, 8192")
    A("s_mov_b64 exec, -1")
    A("L_nostore:")
    if PRE[0]:
        A(f"s_cmp_ge_u32 s{sWave}, 3")
        A("s_cbranch_scc1 L_common")
        A(f"s_lshr_b32 s{sT}, s2, 3")
        A(f"s_mul_i32 s{sT}, s{sT}, {192*128}")
        A(f"s_add_u32 s{sT}, s{sT}, {7680*128}")
        A("v_lshlrev_b32 v12, 7, v0")
        A(f"v_add_u32 v12, s{sT}, v12")
        A(f"buffer_load_dword v228, v12, s[{sSH}:{sSH+3}], 0 offen")
    A("s_branch L_common")
    A("L_helper:")
    weight_dma("h", vL16)
    A(f"s_mov_b32 s{sNon}, 0")
    srd(sWS, 60, 61, WS_BYTES)
    A(f"s_sub_u32 s{sT}, s2, 128")
    A(f"s_cbranch_scc1 L_common")
    A(f"s_lshr_b32 s{sT}, s{sT}, 3")
    A(f"s_cmp_ge_u32 s{sT}, 15")
    A(f"s_cbranch_scc1 L_common")
    A(f"s_lshl_b32 s{sT}, s{sT}, 16")
    A("v_lshlrev_b32 v12, 7, v0")
    A(f"v_add_u32 v12, s{sT}, v12")
    if PREDELAY: A(f"s_waitcnt vmcnt(0)")
    r = 228
    for (cnt, sd) in ((PRE[0], sSH), (PRE[1], sEA), (PRE[2], sX)):
        for q in range(cnt):
            A(f"s_mov_b32 s{sT}, {q*15*65536}")
            A(f"buffer_load_dword v{r}, v12, s[{sd}:{sd+3}], s{sT} offen"); r += 1
    A("L_common:")
    stamp(3)
    srd(sOUT, 48, 49, N * 1024)
    A("v_lshrrev_b32 v12, 2, v0")
    A("v_and_b32 v13, 3, v0")
    A(f"v_lshlrev_b32 v{vEo}, 14, v12")
    A(f"v_lshl_add_u32 v{vEo}, v13, 4, v{vEo}")
    A(f"v_cmp_gt_u32 vcc, {4*G1}, v0")
    A("v_bfrev_b32 v15, 2")
    A(f"v_mul_u32_u24 v{vG}, {CH}, v12")
    A(f"v_cndmask_b32 v{vEo}, v15, v{vEo}, vcc")
    A("s_mov_b64 s[94:95], vcc")
    A(f"s_and_b32 s{sEntO}, s2, 7")
    A(f"s_lshl_b32 s{sEntO}, s{sEntO}, 5")
    A(f"s_lshr_b32 s{sT+1}, s2, 3")
    A(f"s_or_b32 s{sEntO}, s{sEntO}, s{sT+1}")
    A(f"s_lshl_b32 s{sEntO}, s{sEntO}, 6")
    A(f"s_add_u32 s98, s{sEntO}, {PL1}")
    sort_init(True)
    for q in range(D):
        A(f"s_add_u32 s{sSlot+q}, s{sRing}, {q*1024}")
    A(f"s_mul_i32 s{sRecW}, s{sWave}, {CAPW}")
    A(f"s_mov_b32 s101, {SHL}")
    rec_consts()
    A(f"s_mov_b32 s{sM1}, 0x0f0f0f0f\ns_mov_b32 s{sM1+1}, 0x0f0f0f0f")
    A(f"s_mov_b32 s{sM2}, 0xf0f0f0f0\ns_mov_b32 s{sM2+1}, 0xf0f0f0f0")
    A(f"s_mov_b32 s{sMode}, 0")
    A(f"s_mov_b32 s{sRound}, 0")
    A(f"v_bfe_u32 v{vT+8}, v1, 2, 2")
    A(f"v_lshrrev_b32 v12, 4, v1")
    A(f"v_and_b32 v13, 3, v1")
    A(f"v_lshlrev_b32 v{vDMA}, 8, v{vT+8}")
    A(f"v_lshl_add_u32 v{vDMA}, v12, 6, v{vDMA}")
    A(f"v_lshl_add_u32 v{vDMA}, v13, 4, v{vDMA}")
    A(f"v_lshrrev_b32 v14, 5, v1")
    A(f"v_lshl_add_u32 v{vTR}, v14, 8, s{sRing}")
    A(f"v_lshl_add_u32 v{vTR}, v{vT+8}, 6, v{vTR}")
    A(f"v_and_b32 v15, 1, v12")
    A(f"v_lshl_add_u32 v{vTR}, v15, 5, v{vTR}")
    A(f"v_lshl_add_u32 v{vTR}, v13, 3, v{vTR}")
    A(f"v_lshlrev_b32 v{vKh}, 4, v14")
    A(f"v_add_u32 v{vKh}, {EAL}, v{vKh}")
    wave_addrs()
    for r in range(0, 48, 2): A(f"v_mov_b64 v[{ACC+r}:{ACC+r+1}], 0")
    for r in range(0, 8, 2): A(f"v_mov_b64 v[{A1+r}:{A1+r+1}], 0")
    stamp(4)
    A(f"s_cmp_lg_u32 s{sNon}, 0")
    A("s_cbranch_scc1 L_non_okh")
    srd(sTMP, 50, 51, 256)
    A("v_mov_b32 v12, 0")
    A(f"buffer_load_dword v{vN}, v12, s[{sTMP}:{sTMP+3}], 0 offen {SC}")
    nonce_wait("h", vN, 0, sTMP)
    if COND: A(f"v_mov_b32 v{vE+7}, 0")
    ent_load(not COND)
    A(f"s_cmp_ge_u32 s2, {G1}")
    A("s_cbranch_scc1 L_nowd")
    weight_dma("p", vL16)
    A("L_nowd:")
    stamp(5)
    A("s_waitcnt lgkmcnt(0)")
    A("s_barrier")
    stamp(6)
    A(f"s_movk_i32 s{sRem}, {SPIN}")
    A(f"s_cmp_eq_u32 s{sNon}, 0")
    A("s_cbranch_scc1 L_ent_to")
    A("L_ent_chk:")
    A("s_waitcnt vmcnt(0)")
    A(f"v_xor_b32 v{vT}, s{sNon}, v{vE+3}")
    A(f"v_xor_b32 v{vT+1}, s{sNon}, v{vE+7}")
    A(f"v_and_b32 v{vT+2}, 1, v{vT}")
    A(f"v_cmp_lt_u32 vcc, 3, v{vT}")
    A(f"v_cmp_ne_u32 s[96:97], 0, v{vT+2}")
    A(f"v_cmp_ne_u32 s[64:65], 0, v{vT+1}")
    A("s_and_b64 s[64:65], s[64:65], s[96:97]")
    A("s_or_b64 vcc, vcc, s[64:65]")
    A("s_and_b64 vcc, vcc, s[94:95]")
    A("s_cbranch_scc0 L_ent_ok")
    A(f"s_sub_u32 s{sRem}, s{sRem}, 1")
    A("s_cbranch_scc1 L_ent_to")
    if SLEEP: A(f"s_sleep {SLEEP}")
    A("s_mov_b64 exec, vcc")
    ent_load()
    A("s_mov_b64 exec, -1")
    A("s_branch L_ent_chk")
    A("L_ent_to:")
    A("s_waitcnt vmcnt(0)")
    A(f"ds_write_b32 v{vFlag}, v{vOne}")
    for r in range(0, 8, 2): A(f"v_mov_b64 v[{vE+r}:{vE+r+1}], 0")
    A("s_mov_b64 s[96:97], 0")
    A(f"v_mov_b32 v{vT}, 0")
    A("L_ent_ok:")
    if STAMP: A(f"v_writelane_b32 v{vST}, s{sRem}, 21")
    stamp(7)
    A("s_and_b64 s[96:97], s[96:97], s[94:95]")
    A(f"s_or_b32 s{sG2}, s96, s97")
    for i in range(3):
        A(f"v_cndmask_b32 v{vE+4+i}, 0, v{vE+4+i}, s[96:97]")
    A(f"v_and_b32 v{vT}, 2, v{vT}")
    A(f"v_cmp_ne_u32 s[96:97], 0, v{vT}")
    A("s_and_b64 s[96:97], s[96:97], s[94:95]")
    sort_phases(True, "f")
    A("L_sweep:")
    idx_reads(0, 0)
    A("s_waitcnt lgkmcnt(0)")
    for e in range(D + 1):
        A(f"v_readlane_b32 s{sE+e}, v{ENT[0]}, {e}")
    for e in range(D):
        dma_x(e)
    wo_convert()
    A(f"s_waitcnt vmcnt({D}) lgkmcnt(0)")
    A("s_barrier")
    if PRIO: A("s_setprio 2")
    A(f"s_and_b32 s{sT}, s{sWave}, 1")
    A(f"s_lshl_b32 s{sT}, s{sT}, 12")
    A(f"s_add_u32 s{sT}, s{sT}, {WOL}")
    A(f"v_lshl_add_u32 v12, v1, 4, s{sT}")
    A(f"s_sub_u32 s{sRem}, s{sCnt}, 1")
    A("s_cbranch_scc1 L_empty")
    rec_reads()
    A("s_waitcnt lgkmcnt(0)")
    wo_read(0, 16, 12)
    for q in range(4): rw_mfma(q)
    for h in range(2):
        for u in range(4): am_dot(u, h)
    A("s_nop 2")
    am_cvt()
    A(f"s_waitcnt vmcnt({D-1})")
    tr_reads(0)
    A(f"s_waitcnt vmcnt({D-2})")
    tr_reads(1)
    A("s_waitcnt lgkmcnt(2)")
    tp_mfma(0)
    dma_x(D)
    stamp(10)
    A("L_loop:")
    for j in range(16):
        A(f"; ---- step {j}")
        A(f"s_waitcnt vmcnt({VM})")
        tr_reads(j + 2)
        A(f"v_readlane_b32 s{sE + (j + D + 1) % 16}, v{ENT[0]}, {j + D + 1}")
        A(f"s_waitcnt lgkmcnt({5 if j in (1, 4) else 2})")
        if j == 15:
            am_cvt()
            A(f"v_mov_b32 v{ENT[0]}, v{ENT[1]}")
            A("s_nop 0")
        tp_mfma(j + 1)
        dma_x(j + D + 1)
        if j == 0:
            idx_reads(1, 128)
            A(f"v_add_u32 v{vEntA}, 128, v{vEntA}")
            A(f"v_add_u32 v{vRiA}, 128, v{vRiA}")
            A(f"v_add_u32 v{vRiB}, 128, v{vRiB}")
        if j == 3:
            rec_reads()
        if j == 8:
            for u in range(4): am_dot(u, 0)
        if j == 9:
            for u in range(4): am_dot(u, 1)
        fmas(j)
        if j % 4 == 3:
            A(f"s_sub_u32 s{sRem}, s{sRem}, 4")
            A("s_cbranch_scc1 L_sweep_done")
        if j == 15:
            for q in range(4): rw_mfma(q)
            A("s_branch L_loop")
    A("L_empty:")
    wo_read(0, 16, 12)
    A("L_sweep_done:")
    A(f"s_cmp_eq_u32 s{sMode}, 0")
    A("s_cbranch_scc1 L_epi")
    A(f"s_add_u32 s{sRound}, s{sRound}, 1")
    A(f"s_cmp_ge_u32 s{sRound}, {E // CAPL}")
    A("s_cbranch_scc1 L_epi")
    A("s_branch L_slowload")
    A("L_goslow:")
    A(f"s_mov_b32 s{sMode}, 1")
    small_frags()
    A("L_slowload:")
    A("s_waitcnt vmcnt(0) lgkmcnt(0)")
    A("s_barrier")
    wave_addrs()
    A(f"s_mul_i32 s{sT}, s{sRound}, {CAPL}")
    A(f"v_add_u32 v{vT}, s{sT}, v0")
    A(f"v_lshlrev_b32 v{vT+23}, 2, v{vT}")
    A(f"v_mov_b32 v{vG}, v{vT}")
    srd(sTMP, 36, 37, E * 4)
    A(f"buffer_load_dword v{vT+21}, v{vT+23}, s[{sTMP}:{sTMP+3}], 0 offen")
    srd(sTMP, 34, 35, E * 4)
    A(f"buffer_load_dword v{vT+22}, v{vT+23}, s[{sTMP}:{sTMP+3}], 0 offen")
    sort_init(False)
    rec_consts()
    A(f"s_mul_i32 s{sT}, s2, {NPB}")
    A("s_waitcnt vmcnt(0)")
    A(f"v_subrev_u32 v{vT+21}, s{sT}, v{vT+21}")
    A(f"v_lshl_or_b32 v{vT+22}, v{vT+22}, 18, 1")
    A(f"v_lshl_or_b32 v{vE}, v{vT+21}, 12, v{vT+22}")
    A(f"v_cmp_gt_u32 vcc, {NPB}, v{vT+21}")
    A(f"s_movk_i32 s{sT}, {CAPL}")
    A(f"v_cmp_gt_u32 s[96:97], s{sT}, v0")
    A("s_nop 1")
    A("s_and_b64 vcc, vcc, s[96:97]")
    A("s_nop 1")
    A(f"v_cndmask_b32 v{vE}, 0, v{vE}, vcc")
    A("s_waitcnt lgkmcnt(0)")
    A("s_barrier")
    sort_phases(False, "s")
    A("s_branch L_sweep")
    A("L_epi:")
    if PRIO: A("s_setprio 0")
    stamp(11)
    A(f"s_and_b32 s{sT+1}, s{sWave}, 1")
    A(f"s_lshl_b32 s{sT}, s{sT+1}, 3")
    A(f"s_bfe_u32 s{sT+1}, s{sWave}, 0x10001")
    A(f"s_lshl_b32 s{sT+1}, s{sT+1}, 6")
    A(f"s_add_u32 s{sT}, s{sT}, s{sT+1}")
    A(f"s_add_u32 s{sT}, s{sT}, s{sRing}")
    A(f"v_mul_u32_u24 v15, 48, v1")
    A(f"v_add_u32 v15, s{sT}, v15")
    for k in range(5):
        for H in range(2):
            a = ACC + 8 * k + 4 * H
            t = 64 + (k * 2 + H) * 2
            A(f"v_cvt_pk_bf16_f32 v{t}, v{a}, v{a+1}")
            A(f"v_cvt_pk_bf16_f32 v{t+1}, v{a+2}, v{a+3}")
    A("s_waitcnt vmcnt(0) lgkmcnt(0)")
    for k in range(5):
        for H in range(2):
            t = 64 + (k * 2 + H) * 2
            A(f"ds_write_b64 v15, v[{t}:{t+1}] offset:{H*64*48 + k*8}")
    A(f"v_lshrrev_b32 v7, 4, v1")
    A(f"v_bfe_u32 v8, v1, 2, 2")
    A(f"v_and_b32 v9, 3, v1")
    A(f"v_lshl_add_u32 v11, v7, 3, v8")
    A(f"v_mul_u32_u24 v11, 48, v11")
    A(f"v_lshl_add_u32 v11, v9, 13, v11")
    A(f"v_and_b32 v12, 1, v9")
    A(f"v_lshl_add_u32 v11, v12, 3, v11")
    A(f"v_lshrrev_b32 v12, 1, v9")
    A(f"v_lshl_add_u32 v11, v12, 6, v11")
    A(f"s_bfe_u32 s{sT}, s{sWave}, 0x10001")
    A(f"s_lshr_b32 s{sT+1}, s{sWave}, 2")
    A(f"s_lshl_b32 s40, s{sT}, 15")
    A(f"s_lshl_b32 s41, s{sT+1}, 3")
    A(f"s_add_u32 s40, s40, s41")
    A(f"v_add_u32 v11, s40, v11")
    A(f"s_lshl_b32 s40, s{sT}, 7")
    A(f"s_lshl_b32 s41, s{sT+1}, 2")
    A(f"s_add_u32 s40, s40, s41")
    A(f"s_add_u32 s40, s40, {NODE}")
    A(f"v_lshl_add_u32 v13, v7, 5, s40")
    for u in range(3):
        A(f"ds_read_b32 v{4+u}, v13 offset:{u*8}")
    A(f"v_and_b32 v12, 15, v1")
    A(f"s_and_b32 s41, s{sWave}, 1")
    A(f"s_lshl_b32 s41, s41, 7")
    A(f"v_lshl_add_u32 v12, v12, 3, s41")
    A(f"s_mul_i32 s{sT}, s2, {NPB*1024}")
    A("s_waitcnt lgkmcnt(0)")
    for u in range(3):
        A(f"v_lshl_add_u32 v{4+u}, v{4+u}, 10, v12")
    A("s_barrier")
    stamp(12)
    def breads(u):
        for s in range(4):
            for tt in range(2):
                r = 16 + u * 16 + s * 4 + 2 * tt
                A(f"ds_read_b64_tr_b16 v[{r}:{r+1}], v11 offset:{u*16 + (32*s + 4*tt)*48}")
    def mm(u):
        d = 64 + u * 16
        for s in range(4):
            for a in range(4):
                b = 16 + u * 16 + s * 4
                w = WO + (a * 4 + s) * 4
                c = "0" if s == 0 else f"v[{d+4*a}:{d+4*a+3}]"
                A(f"v_mfma_f32_16x16x32_bf16 v[{d+4*a}:{d+4*a+3}], v[{b}:{b+3}], v[{w}:{w+3}], {c}")
    def fin(u):
        d = 64 + u * 16
        o = 112 + u * 8
        for r in range(4):
            A(f"v_cvt_pk_bf16_f32 v{o+2*r}, v{d+r}, v{d+4+r}")
            A(f"v_cvt_pk_bf16_f32 v{o+2*r+1}, v{d+8+r}, v{d+12+r}")
            A(f"buffer_store_dwordx2 v[{o+2*r}:{o+2*r+1}], v{4+u}, s[{sOUT}:{sOUT+3}], s{sT} offen offset:{r*256} {STFL}")
    breads(0)
    breads(1)
    A("s_waitcnt lgkmcnt(8)")
    mm(0)
    A(f"s_cmp_ge_u32 s{sWave}, 4")
    A("s_cbranch_scc1 L_epi2")
    breads(2)
    A("s_waitcnt lgkmcnt(8)")
    mm(1)
    fin(0)
    A("s_waitcnt lgkmcnt(0)")
    mm(2)
    fin(1)
    A("s_nop 3")
    fin(2)
    A("s_branch L_epi3")
    A("L_epi2:")
    A("s_waitcnt lgkmcnt(0)")
    mm(1)
    fin(0)
    A("s_nop 3")
    fin(1)
    A("L_epi3:")
    if STAMP:
        stamp(13)
        A("s_waitcnt vmcnt(0)")
        stamp(14)
        A(f"v_writelane_b32 v{vST}, s{sCnt}, 20")
        srd(sWS, 60, 61, 0x10000000)
        A(f"s_lshl_b32 s{sT}, s2, 3")
        A(f"s_add_u32 s{sT}, s{sT}, s{sWave}")
        A(f"s_lshl_b32 s{sT}, s{sT}, 8")
        A(f"s_add_u32 s{sT}, s{sT}, 0x8000000")
        A("v_lshlrev_b32 v7, 2, v1")
        A(f"buffer_store_dword v{vST}, v7, s[{sWS}:{sWS+3}], s{sT} offen")
    A("L_main_end:")
    A("s_endpgm")

SLEEP = 0
EARLY = 1
PREDELAY = 0
DMASCHED = [[0, 1, 2, 3, 4], [], [], []]
def build(path, stamps=False, VM=5, stfl='nt', pre=(1, 0, 0), sc='sc1', sleep=0, sched=None, early=1, predelay=0, pat=(0, 2, 3, 1, 7), prio=0, cond=1):
    global PATTERN, PRIO, COND
    COND = cond
    PRIO = prio
    PATTERN = sum(x << (4 * i) for i, x in enumerate(pat))
    global L, STAMP, STFL, SC, SLEEP, DMASCHED, EARLY, PREDELAY
    PREDELAY = predelay
    EARLY = early
    STAMP, STFL, SC, SLEEP = stamps, stfl, sc, sleep
    DMASCHED = sched or [[0], [1], [2], [3, 4]]
    L = []
    A(f"; @launch grid=({NB},1,1) block=(512,1,1) lds={LDS_MAIN}")
    A('.amdgcn_target "amdgcn-amd-amdhsa--gfx950"')
    A(".text")
    kernel(VM, pre)
    A('.section .rodata,"a"')
    A(".p2align 6")
    A(desc(KN, NVG, 102))
    open(path, "w").write("\n".join(x for x in L if x is not None) + "\n")

if __name__ == "__main__":
    S0 = [[0, 1, 2, 3, 4], [], [], []]
    S1 = [[0, 1], [], [2, 3, 4], []]
    S2 = [[0], [1], [2], [3, 4]]
    build("v10.s", sched=S1)
    build("v10a_st.s", stamps=True, sched=S1)
    build("v10b_st.s", stamps=True, sched=S1, cond=0)
    build("v10c_st.s", stamps=True, sched=S1, pre=(0, 0, 0))
    build("v10d_st.s", stamps=True, sched=S0)
    build("v10e_st.s", stamps=True, sched=S1, stfl="sc0 sc1")
    print(LDS_MAIN)
```

```python
import sys

KN = "gather_scatter__tensor_product_equiv_mace__graph_kernel"
N, E = 10000, 160000
NB, NPB = 250, 40
G1, CH = 250, 640
GST = 16384 + 128
PLN = G1 * GST
WS_BYTES = 4 * PLN
CAPW = 144
CAPL = 128
D = 8
EAL = 65536
SHL = EAL + 8 * CAPW * 32
LSTRIDE = 160 * 8
LIST = SHL + 8 * CAPW * 8
HIST = LIST + 8 * LSTRIDE
DEG = HIST + 40 * 160
NODE = DEG + 256
FLAG = NODE + 256
WOL = FLAG + 16 + 48
LDS_MAIN = WOL + 32768
PADW = (N << 10) | 40
PADE = 0x00FFFFFF
CNT = 65536
SPIN = 4000
SC = "sc1"

L = []
def A(s): L.append(s)

class O: pass
o = O()
vST = 250
def stamp(n):
    if not o.stamps: return
    A("s_memrealtime s[4:5]")
    A("s_waitcnt lgkmcnt(0)")
    A(f"v_writelane_b32 v{vST}, s4, {n}")

def srd(d, lo, hi, nbytes):
    A(f"s_mov_b32 s{d}, s{lo}")
    A(f"s_mov_b32 s{d+1}, s{hi}")
    A(f"s_mov_b32 s{d+2}, {nbytes}")
    A(f"s_mov_b32 s{d+3}, 0x20000")

def desc(name, nvg, nsg):
    return (f".amdhsa_kernel {name}\n  .amdhsa_next_free_vgpr {nvg}\n  .amdhsa_next_free_sgpr {nsg}\n"
            f"  .amdhsa_accum_offset {(nvg+3)//4*4}\n  .amdhsa_group_segment_fixed_size 0\n  .amdhsa_kernarg_size 88\n"
            f"  .amdhsa_user_sgpr_count 2\n  .amdhsa_user_sgpr_kernarg_segment_ptr 1\n  .amdhsa_system_sgpr_workgroup_id_x 1\n"
            f"  .amdhsa_float_denorm_mode_32 3\n.end_amdhsa_kernel")

def dpp_scan(v):
    for sh in (1, 2, 4, 8):
        A("s_nop 1")
        A(f"v_add_u32_dpp v{v}, v{v}, v{v} row_shr:{sh} row_mask:0xf bank_mask:0xf bound_ctrl:0")
    A("s_nop 1")
    A(f"v_add_u32_dpp v{v}, v{v}, v{v} row_bcast:15 row_mask:0xa bank_mask:0xf")
    A("s_nop 1")
    A(f"v_add_u32_dpp v{v}, v{v}, v{v} row_bcast:31 row_mask:0xc bank_mask:0xf")

ACC = 16
RW = 64
WR = 96
A1, A2 = 112, 116
CG = 120
SHV = 128
AMF = 130
AM = 134
XB = [136, 140]
TP = [144, 152]
ENT = [160, 161]
vRA, vRB = 162, 163
WO = 164
NVG = 252
vDMA, vTR, vEntA, vRiA, vRiB, vKh = 2, 3, 4, 5, 6, 7
vFlag, vOne, v64 = 9, 10, 11
sX, sEA, sSH, sWS, sOUT, sTMP = 8, 12, 16, 20, 24, 28
sWave, sRing, sRem, sCnt, sRound, sMode, sNw, sG2, sRecW = 3, 52, 53, 54, 55, 56, 57, 58, 59
sEaW, sShW = 96, 97
sE = 64
sT = 80
sM1, sM2 = 82, 84
sSlot = 86
sNon, sEntO = 6, 7
PC = 180
def pc(i): return o.pcb + 4 * i
vKey, vRank, vB = 64, 72, 80
vG = [88, 89]
vEo = [90, 91]
vP3, vFl = 92, 94
vT = 128
vL16, vN = 212, 238
eT, eR, eC, eO, eN = 244, 245, 247, 12, 248
def mk(i): return 64 + 2 * i

def sort_init(first):
    A(f"v_mov_b64 v[{vT}:{vT+1}], 0")
    A(f"v_mov_b64 v[{vT+2}:{vT+3}], 0")
    A(f"v_min_u32 v{vT+6}, 399, v0")
    A(f"v_lshlrev_b32 v{vT+6}, 4, v{vT+6}")
    A(f"v_add_u32 v{vT+6}, {HIST}, v{vT+6}")
    A(f"ds_write_b128 v{vT+6}, v[{vT}:{vT+3}]")
    A(f"v_lshlrev_b32 v{vT+5}, 2, v1")
    if first:
        A(f"v_add_u32 v{vT+7}, {DEG}, v{vT+5}")
        A(f"ds_write_b32 v{vT+7}, v1")
    A(f"v_mov_b32 v{vT+4}, {PADE}")
    A(f"v_add_u32 v{vT+5}, s{sRing}, v{vT+5}")
    for q in range(3):
        A(f"ds_write_b32 v{vT+5}, v{vT+4} offset:{q*256}")
    A(f"v_mov_b32 v{vT+8}, {PADW}")
    A(f"v_mov_b32 v{vT+9}, 0")
    A(f"v_mov_b64 v[{vT+10}:{vT+11}], v[{vT+8}:{vT+9}]")
    A(f"v_lshlrev_b32 v{vT+7}, 4, v0")
    A(f"v_add_u32 v{vT+7}, {LIST}, v{vT+7}")
    A(f"ds_write_b128 v{vT+7}, v[{vT+8}:{vT+11}]")
    A(f"ds_write_b128 v{vT+7}, v[{vT+8}:{vT+11}] offset:2048")
    A(f"v_mov_b32 v{v64}, 64")

def rec_dma(m, tag, cond=True):
    if cond:
        A(f"s_cmp_le_u32 s{sNw}, {32*m}")
        A(f"s_cbranch_scc1 L_rd_{tag}{m}")
    if m == 4: A("s_mov_b32 exec_hi, 0")
    A(f"s_add_u32 m0, s{sEaW}, {m*1024}")
    A(f"v_lshl_add_u32 v{vT+26}, v{vT+16+m}, 5, v{vP3}")
    A(f"buffer_load_dwordx4 v{vT+26}, s[{sEA}:{sEA+3}], 0 offen lds")
    if m == 4: A("s_mov_b32 exec_hi, -1")
    if cond: A(f"L_rd_{tag}{m}:")

def ent_load(i):
    so = sEntO if i < 2 else 98
    A(f"buffer_load_dwordx4 v[{pc(i)}:{pc(i)+3}], v{vEo[i%2]}, s[{sWS}:{sWS+3}], s{so} offen {SC}")

def p1a(ids):
    for i in ids:
        A(f"v_and_b32 v{vT}, 1, v{pc(i)+2}")
        A(f"v_cmp_ne_u32 s[{mk(i)}:{mk(i)+1}], 0, v{vT}")
        A(f"v_bfe_u32 v{vT+2+i%2}, v{pc(i)+2}, 1, 10")
        A(f"v_add_u32 v{vT+2+i%2}, v{vT+2+i%2}, v{vG[i%2]}")
    for i in ids:
        A(f"v_mov_b32 v{vB+i}, s{sNw}")
        A(f"v_mbcnt_lo_u32_b32 v{vB+i}, s{mk(i)}, v{vB+i}")
        A(f"v_mbcnt_hi_u32_b32 v{vB+i}, s{mk(i)+1}, v{vB+i}")
        A(f"s_bcnt1_i32_b64 s{sT}, s[{mk(i)}:{mk(i)+1}]")
        A(f"s_add_u32 s{sNw}, s{sNw}, s{sT}")
        A(f"v_lshl_add_u32 v{vT+4+i%2}, v{vB+i}, 2, s{sRing}")
        A(f"v_min_u32 v{vB+i}, {CAPW-1}, v{vB+i}")
        A(f"v_lshl_add_u32 v{vT+6+i%2}, v{vB+i}, 3, s{sShW}")
    for i in ids:
        A(f"s_mov_b64 exec, s[{mk(i)}:{mk(i)+1}]")
        A(f"ds_write_b32 v{vT+4+i%2}, v{vT+2+i%2}")
        A(f"ds_write_b64 v{vT+6+i%2}, v[{pc(i)}:{pc(i)+1}]")
    A("s_mov_b64 exec, -1")

def p1b(ids, first):
    for i in ids:
        A(f"v_bfe_u32 v{vT+8+i%2}, v{pc(i)+2}, 12, 6")
        A(f"v_lshrrev_b32 v{vKey+i}, 26, v{pc(i)+2}")
        A(f"v_mad_u32_u24 v{vKey+i}, v{vT+8+i%2}, 40, v{vKey+i}")
        A(f"v_lshl_add_u32 v{vKey+i}, v{vKey+i}, 2, s100")
        A(f"v_lshl_add_u32 v{vT+8+i%2}, v{vT+8+i%2}, 2, s100")
        A(f"v_add_u32 v{vB+i}, s{sRecW}, v{vB+i}")
    for i in ids:
        A(f"s_mov_b64 exec, s[{mk(i)}:{mk(i)+1}]")
        if first: A(f"ds_add_u32 v{vT+8+i%2}, v{v64} offset:{DEG-HIST}")
        A(f"ds_add_rtn_u32 v{vRank+i}, v{vKey+i}, v{vOne}")
    A("s_mov_b64 exec, -1")

def ext_group(g):
    A(f"s_movk_i32 s{sRem}, {SPIN}")
    A(f"s_branch L_x{g}_chk")
    A(f"L_x{g}_again:")
    for h in range(2):
        A(f"s_mov_b64 exec, s[{40+2*h}:{41+2*h}]")
        A(f"s_cbranch_execz L_x{g}_s{h}")
        ent_load(2 * g + h)
        A(f"L_x{g}_s{h}:")
    A("s_mov_b64 exec, -1")
    A("s_waitcnt vmcnt(0)")
    A(f"L_x{g}_chk:")
    A(f"v_cmp_ne_u32 vcc, s{sNon}, v{pc(2*g)+3}")
    A(f"v_cmp_ne_u32 s[44:45], s{sNon}, v{pc(2*g+1)+3}")
    A("s_and_b64 vcc, vcc, s[40:41]")
    A("s_and_b64 s[44:45], s[44:45], s[42:43]")
    A("s_or_b64 vcc, vcc, s[44:45]")
    A(f"s_cbranch_scc0 L_x{g}_ok")
    A(f"s_sub_u32 s{sRem}, s{sRem}, 1")
    A(f"s_cbranch_scc0 L_x{g}_again")
    A(f"ds_write_b32 v{vFlag}, v{vOne}")
    A("s_mov_b64 s[40:41], 0")
    A("s_mov_b64 s[42:43], 0")
    A(f"L_x{g}_ok:")
    for h in range(2):
        A(f"v_cndmask_b32 v{pc(2*g+h)+2}, 0, v{pc(2*g+h)+2}, s[{40+2*h}:{41+2*h}]")
    p1a([2 * g, 2 * g + 1])
    p1b([2 * g, 2 * g + 1], True)

def per_group(first, body, tag):
    if not first:
        body([0]); return
    body([0, 1])
    for g in (1, 2, 3):
        A(f"s_cmp_lt_u32 s{sG2}, {g}")
        A(f"s_cbranch_scc1 L_{tag}")
        body([2 * g, 2 * g + 1])
    A(f"L_{tag}:")

def sort_rest(first, tag):
    A("s_waitcnt lgkmcnt(0)")
    A("s_barrier")
    if first: stamp(8)
    A(f"v_lshlrev_b32 v{vT}, 2, v1")
    A(f"v_add_u32 v{vT}, {HIST}, v{vT}")
    if first:
        A(f"ds_read_b32 v{vT+1}, v{vT} offset:{DEG-HIST}")
        A(f"s_mul_i32 s{sT+1}, s{sWave}, 5")
        A(f"v_add_u32 v{vT+3}, s{sT+1}, v1")
        A("s_mov_b32 exec_hi, 0xff")
        A("s_waitcnt lgkmcnt(0)")
        for k in range(5):
            A(f"v_readlane_b32 s{40+k}, v{vT+1}, s{sT+1}")
            A(f"s_add_u32 s{sT+1}, s{sT+1}, 1")
        for k in range(5):
            A(f"v_cmp_lt_u32 vcc, s{40+k}, v{vT+1}")
            A(f"s_bcnt1_i32_b64 s{40+k}, vcc")
        for k in range(5):
            A(f"v_writelane_b32 v{vT+2}, s{40+k}, {k}")
        A("s_mov_b64 exec, 0x1f")
        A(f"v_lshrrev_b32 v{vT+4}, 3, v{vT+2}")
        A(f"v_lshlrev_b32 v{vT+5}, 2, v{vT+4}")
        A(f"s_mov_b32 s40, {o.pattern}")
        A(f"v_lshrrev_b32 v{vT+5}, v{vT+5}, s40")
        A(f"v_xor_b32 v{vT+2}, v{vT+2}, v{vT+5}")
        A(f"v_and_b32 v{vT+2}, 7, v{vT+2}")
        A(f"v_lshl_add_u32 v{vT+2}, v{vT+2}, 3, v{vT+4}")
        A(f"v_lshlrev_b32 v{vT+2}, 2, v{vT+2}")
        A(f"v_add_u32 v{vT+2}, {NODE}, v{vT+2}")
        A(f"ds_write_b32 v{vT+2}, v{vT+3}")
        A("s_mov_b64 exec, -1")
        for m in o.sched[1]: rec_dma(m, tag)
        A("s_waitcnt lgkmcnt(0)")
        A("s_barrier")
    A(f"s_lshl_b32 s{sT}, s{sWave}, 5")
    A(f"s_add_u32 s{sT}, s{sT}, {NODE}")
    A(f"v_mov_b32 v{vT+1}, s{sT}")
    A(f"ds_read_b128 v[{vT+4}:{vT+7}], v{vT+1}")
    A(f"ds_read_b32 v{vT+8}, v{vT+1} offset:16")
    A("s_waitcnt lgkmcnt(0)")
    A(f"s_movk_i32 s{sT}, 160")
    for k in range(5):
        A(f"v_mad_u32_u24 v{vT+4+k}, v{vT+4+k}, s{sT}, v{vT}")
        A(f"ds_read_b32 v{vT+10+k}, v{vT+4+k}")
    A(f"s_mul_i32 s{sT}, s{sWave}, {LSTRIDE//8}")
    A(f"s_add_u32 s{sT}, s{sT}, {LIST//8}")
    A("s_waitcnt lgkmcnt(0)")
    A(f"v_add3_u32 v{vT}, v{vT+10}, v{vT+11}, v{vT+12}")
    A(f"v_add3_u32 v{vT}, v{vT}, v{vT+13}, v{vT+14}")
    A(f"v_mov_b32 v{vT+1}, v{vT}")
    dpp_scan(vT + 1)
    A("s_nop 0")
    A(f"v_readlane_b32 s{sCnt}, v{vT+1}, 39")
    A(f"v_sub_u32 v{vT+1}, v{vT+1}, v{vT}")
    A(f"v_add_u32 v{vT+1}, s{sT}, v{vT+1}")
    A(f"s_mov_b32 s{sT}, 0x1000000")
    A("s_mov_b32 exec_hi, 0xff")
    for k in range(5):
        A(f"ds_write_b32 v{vT+4+k}, v{vT+1}")
        if k < 4: A(f"v_add3_u32 v{vT+1}, v{vT+1}, v{vT+10+k}, s{sT}")
    A("s_mov_b32 exec_hi, -1")
    if first:
        A(f"s_cmp_le_u32 s{sCnt}, {CAPL}")
        A(f"s_cbranch_scc1 L_nof_{tag}")
        A(f"ds_write_b32 v{vFlag}, v{vOne}")
        A(f"L_nof_{tag}:")
        for m in o.sched[2]: rec_dma(m, tag)
    A("s_waitcnt lgkmcnt(0)")
    A("s_barrier")
    if first: stamp(9)
    if first:
        A(f"ds_read_b32 v{vT+28}, v{vFlag}")
    def p3a(ids):
        for i in ids:
            A(f"ds_read_b32 v{vKey+i}, v{vKey+i}")
        for i in ids:
            A(f"v_lshrrev_b32 v{vT+2*i}, 18, v{pc(i)+2}")
            A(f"v_lshlrev_b32 v{vT+2*i}, 10, v{vT+2*i}")
            A(f"v_mov_b32 v{vT+2*i+1}, v{vB+i}")
    per_group(first, p3a, f"p3a_{tag}")
    A("s_waitcnt lgkmcnt(0)")
    if first:
        A(f"v_readfirstlane_b32 s{sT}, v{vT+28}")
        A(f"s_cmp_lg_u32 s{sT}, 0")
        A("s_cbranch_scc1 L_goslow")
    def p3b(ids):
        for i in ids:
            A(f"v_lshrrev_b32 v{vT+29}, 21, v{vKey+i}")
            A(f"v_or_b32 v{vT+2*i}, v{vT+2*i}, v{vT+29}")
            A(f"v_and_b32 v{vKey+i}, 0xffffff, v{vKey+i}")
            A(f"v_add_lshl_u32 v{vKey+i}, v{vRank+i}, v{vKey+i}, 3")
        for i in ids:
            A(f"s_mov_b64 exec, s[{mk(i)}:{mk(i)+1}]")
            A(f"ds_write_b64 v{vKey+i}, v[{vT+2*i}:{vT+2*i+1}]")
        A("s_mov_b64 exec, -1")
    per_group(first, p3b, f"p3b_{tag}")
    if first:
        for m in o.sched[3]: rec_dma(m, tag)
    A("s_waitcnt lgkmcnt(0)")
    A("s_barrier")

def idx_reads(p, off):
    A(f"ds_read_b32 v{ENT[p]}, v{vEntA} offset:{off}")
    A(f"ds_read_b32 v{vRA}, v{vRiA} offset:{off}")
    A(f"ds_read_b32 v{vRB}, v{vRiB} offset:{off}")

def rec_reads():
    A(f"v_lshl_add_u32 v{vRA}, v{vRA}, 5, v{vKh}")
    A(f"v_lshl_add_u32 v{vRB}, v{vRB}, 3, s101")
    A(f"ds_read_b64 v[{SHV}:{SHV+1}], v{vRB}")
    A(f"s_mov_b64 exec, s[{sM1}:{sM1+1}]")
    A(f"ds_read_b128 v[{A1}:{A1+3}], v{vRA}")
    A(f"s_mov_b64 exec, s[{sM2}:{sM2+1}]")
    A(f"ds_read_b128 v[{A2}:{A2+3}], v{vRA}")
    A("s_mov_b64 exec, -1")

def rw_mfma(q):
    H, hf = q >> 1, q & 1
    d = RW + 16 * H
    a = A1 if hf == 0 else A2
    b = WR + (H * 2 + hf) * 4
    c = "0" if hf == 0 else f"v[{d}:{d+15}]"
    A(f"v_mfma_f32_32x32x16_bf16 v[{d}:{d+15}], v[{a}:{a+3}], v[{b}:{b+3}], {c}")

def am_dot(u, half):
    if half == 0:
        A(f"v_dot2_f32_bf16 v{AMF+u}, v{SHV}, v{CG+2*u}, 0")
    else:
        A(f"v_dot2_f32_bf16 v{AMF+u}, v{SHV+1}, v{CG+2*u+1}, v{AMF+u}")

def am_cvt():
    A(f"v_cvt_pk_bf16_f32 v{AM}, v{AMF}, v{AMF+1}")
    A(f"v_cvt_pk_bf16_f32 v{AM+1}, v{AMF+2}, v{AMF+3}")

def tr_reads(e):
    xb = XB[e % 2]
    A(f"ds_read_b64_tr_b16 v[{xb}:{xb+1}], v{vTR} offset:{(e % D)*1024}")
    A(f"ds_read_b64_tr_b16 v[{xb+2}:{xb+3}], v{vTR} offset:{(e % D)*1024+512}")

def tp_mfma(e):
    xb, tp = XB[e % 2], TP[e % 2]
    A(f"v_mfma_f32_4x4x4_16b_bf16 v[{tp}:{tp+3}], v[{AM}:{AM+1}], v[{xb}:{xb+1}], 0 cbsz:4 abid:{e % 16}")
    A(f"v_mfma_f32_4x4x4_16b_bf16 v[{tp+4}:{tp+7}], v[{AM}:{AM+1}], v[{xb+2}:{xb+3}], 0 cbsz:4 abid:{e % 16}")

def dma_x(e):
    A(f"s_mov_b32 m0, s{sSlot + e % D}")
    A(f"s_and_b32 s{sT}, s{sE + e % 16}, 0xfffffc00")
    A(f"buffer_load_dwordx4 v{vDMA}, s[{sX}:{sX+3}], s{sT} offen lds")

def fmas(e):
    tp = TP[e % 2]
    A(f"s_set_gpr_idx_on s{sE + e % 16}, gpr_idx(SRC2,DST)")
    for H in range(2):
        rw = RW + 16 * H + e % 16
        for w in range(4):
            A(f"v_fmac_f32 v{ACC + 4*H + w}, v{tp + 4*H + w}, v{rw}")
    A("s_set_gpr_idx_off")

def wave_addrs():
    A(f"s_mul_i32 s{sT}, s{sWave}, {LSTRIDE}")
    A(f"s_add_u32 s{sT}, s{sT}, {LIST}")
    A(f"v_lshl_add_u32 v{vEntA}, v1, 3, s{sT}")
    A(f"s_add_u32 s{sT}, s{sT}, 4")
    A(f"v_lshrrev_b32 v{vRiB}, 2, v1")
    A(f"v_lshl_add_u32 v{vRiB}, v{vRiB}, 3, s{sT}")
    A(f"v_bfe_u32 v12, v1, 3, 2")
    A(f"v_and_b32 v13, 3, v1")
    A(f"v_lshl_add_u32 v12, v12, 2, v13")
    A(f"v_lshl_add_u32 v{vRiA}, v12, 3, s{sT}")

vWa = 246
sWo = 63
def wo_block():
    t = 224 + 4
    for i in range(4):
        A(f"ds_read2_b64 v[{WT+4*i}:{WT+4*i+3}], v{vWa} offset0:{i*64} offset1:{i*64+32}")
    A(f"v_add_u32 v{vWa}, 8192, v{vWa}")
    A("s_waitcnt lgkmcnt(0)")
    A(f"s_set_gpr_idx_on s{sWo}, gpr_idx(DST)")
    for a in range(4):
        for j in range(4):
            r = WT + 4 * j + (a >> 1)
            A(f"v_perm_b32 v{WO + a*16 + j}, v{r+2}, v{r}, s{44 + (a & 1)}")
    A("s_set_gpr_idx_off")
    A(f"s_add_u32 s{sWo}, s{sWo}, 4")

WT = 228
def epi_addrs():
    A(f"s_and_b32 s{sT+1}, s{sWave}, 1")
    A(f"s_lshl_b32 s{sT}, s{sT+1}, 3")
    A(f"s_bfe_u32 s{sT+1}, s{sWave}, 0x10001")
    A(f"s_lshl_b32 s{sT+1}, s{sT+1}, 6")
    A(f"s_add_u32 s{sT}, s{sT}, s{sT+1}")
    A(f"s_add_u32 s{sT}, s{sT}, s{sRing}")
    A(f"v_mul_u32_u24 v{eT}, 48, v1")
    A(f"v_add_u32 v{eT}, s{sT}, v{eT}")
    A(f"v_lshrrev_b32 v12, 4, v1")
    A(f"v_bfe_u32 v13, v1, 2, 2")
    A(f"v_and_b32 v14, 3, v1")
    A(f"v_lshl_add_u32 v{eR}, v12, 3, v13")
    A(f"v_mul_u32_u24 v{eR}, 48, v{eR}")
    A(f"v_lshl_add_u32 v{eR}, v14, 13, v{eR}")
    A(f"v_and_b32 v15, 1, v14")
    A(f"v_lshl_add_u32 v{eR}, v15, 3, v{eR}")
    A(f"v_lshrrev_b32 v15, 1, v14")
    A(f"v_lshl_add_u32 v{eR}, v15, 6, v{eR}")
    A(f"s_lshr_b32 s{sT}, s{sWave}, 2")
    A(f"s_bfe_u32 s42, s{sWave}, 0x10001")
    A(f"s_xor_b32 s42, s42, s{sT}")
    A(f"s_lshl_b32 s43, s{sT}, 2")
    A(f"s_add_u32 s43, s43, {FLAG+8}")
    A(f"v_mov_b32 v{eC}, s43")
    A(f"s_lshl_b32 s40, s{sT}, 15")
    A(f"s_lshl_b32 s41, s42, 3")
    A(f"s_add_u32 s40, s40, s41")
    A(f"v_add_u32 v{eR}, s40, v{eR}")
    A(f"s_lshl_b32 s40, s{sT}, 7")
    A(f"s_lshl_b32 s41, s42, 2")
    A(f"s_add_u32 s40, s40, s41")
    A(f"s_add_u32 s40, s40, {NODE}")
    A(f"v_lshl_add_u32 v{eN}, v12, 5, s40")
    A(f"v_and_b32 v13, 15, v1")
    A(f"s_and_b32 s41, s{sWave}, 1")
    A(f"s_lshl_b32 s41, s41, 7")
    A(f"v_lshl_add_u32 v{eN+1}, v13, 3, s41")
    A(f"v_lshl_add_u32 v{vWa}, v12, 11, v{eN+1}")
    A(f"v_add_u32 v{vWa}, {WOL}, v{vWa}")
    A(f"s_mov_b32 s{sWo}, 0")
    A(f"s_mov_b32 s62, s42")

def small_frags():
    t = WO
    A(f"v_lshrrev_b32 v13, 5, v1")
    A(f"v_bfe_u32 v14, v1, 4, 1")
    A(f"v_lshlrev_b32 v13, 14, v13")
    A(f"v_lshl_add_u32 v13, v14, 5, v13")
    A(f"v_bfe_u32 v12, v1, 2, 2")
    A(f"v_lshl_add_u32 v13, v12, 8, v13")
    A(f"v_and_b32 v12, 3, v1")
    A(f"v_lshl_add_u32 v13, v12, 3, v13")
    A(f"v_lshlrev_b32 v14, 1, v12")
    for i in range(16):
        if i == 12: A("s_waitcnt lgkmcnt(4)")
        A(f"ds_read_u16 v{t+i}, v14 offset:{7168 + i*8}")
    A("s_waitcnt lgkmcnt(4)")
    for H in range(2):
        for hf in range(2):
            for tt in range(2):
                r = WR + (H * 2 + hf) * 4 + 2 * tt
                A(f"ds_read_b64_tr_b16 v[{r}:{r+1}], v13 offset:{32768 + 7168 + tt*8192 + H*128 + hf*64}")
    A("s_waitcnt lgkmcnt(8)")
    for q in range(8):
        A(f"v_lshl_or_b32 v{CG+q}, v{t+2*q+1}, 16, v{t+2*q}")
    A("s_waitcnt lgkmcnt(0)")

def wout_dma():
    srd(sEA, 46, 47, 32768)
    A(f"s_lshl_b32 s{sT}, s{sWave}, 12")
    A(f"s_add_u32 m0, s{sT}, {WOL}")
    A("s_nop 0")
    for q in range(4):
        A(f"buffer_load_dwordx4 v{vL16}, s[{sEA}:{sEA+3}], s{sT} offen offset:{q*1024} lds")

def small_dma():
    A(f"s_add_u32 m0, s{sRing}, 7168")
    A(f"s_cmp_ge_u32 s{sWave}, 4")
    A(f"s_cbranch_scc1 L_wr")
    A(f"s_cmp_lg_u32 s{sWave}, 0")
    A(f"s_cbranch_scc1 L_cg")
    srd(sTMP, 42, 43, 128)
    A("v_lshlrev_b32 v12, 2, v1")
    A(f"buffer_load_dword v12, s[{sTMP}:{sTMP+3}], 0 offen lds")
    A(f"s_branch L_cg")
    A(f"L_wr:")
    srd(sTMP, 44, 45, 4096)
    A(f"s_and_b32 s{sT}, s{sWave}, 3")
    A(f"s_lshl_b32 s{sT}, s{sT}, 10")
    A(f"buffer_load_dwordx4 v{vL16}, s[{sTMP}:{sTMP+3}], s{sT} offen lds")
    A(f"L_cg:")

def rec_consts():
    A(f"s_mul_i32 s{sEaW}, s{sWave}, {CAPW*32}")
    A(f"s_add_u32 s{sEaW}, s{sEaW}, {EAL}")
    A(f"s_mul_i32 s{sShW}, s{sWave}, {CAPW*8}")
    A(f"s_add_u32 s{sShW}, s{sShW}, {SHL}")
    A(f"v_and_b32 v{vP3}, 1, v1")
    A(f"v_lshlrev_b32 v{vP3}, 4, v{vP3}")
    A(f"v_lshrrev_b32 v{vFl}, 1, v1")
    A(f"v_lshl_add_u32 v{vFl}, v{vFl}, 2, s{sRing}")

def nonce_wait(tag):
    A(f"s_movk_i32 s{sRem}, {SPIN}")
    A("v_mov_b32 v12, 0")
    A(f"L_non{tag}:")
    A("s_waitcnt vmcnt(0)")
    A(f"v_readfirstlane_b32 s{sNon}, v{vN}")
    A(f"s_cmp_lg_u32 s{sNon}, 0")
    A(f"s_cbranch_scc1 L_non_ok{tag}")
    A(f"s_sub_u32 s{sRem}, s{sRem}, 1")
    A(f"s_cbranch_scc1 L_non_ok{tag}")
    A(f"buffer_load_dword v{vN}, v12, s[{sWS}:{sWS+3}], 0 offen {SC}")
    A(f"s_branch L_non{tag}")
    A(f"L_non_ok{tag}:")
    A(f"ds_write_b32 v{vFlag}, v{vN} offset:4")

def setup():
    A("v_lshrrev_b32 v12, 2, v1")
    A(f"s_lshl_b32 s{sT}, s{sWave}, 5")
    A(f"v_add_u32 v12, s{sT}, v12")
    A("v_and_b32 v13, 3, v1")
    A("v_lshlrev_b32 v13, 4, v13")
    A(f"s_movk_i32 s{sT}, {GST}")
    A(f"v_mad_u32_u24 v{vEo[0]}, v12, s{sT}, v13")
    A(f"v_mul_u32_u24 v{vG[0]}, {CH}, v12")
    A(f"v_cmp_gt_u32 vcc, {G1-16}, v12")
    A("v_bfrev_b32 v15, 2")
    A(f"v_add_u32 v{vEo[1]}, {16*GST}, v{vEo[0]}")
    A(f"v_add_u32 v{vG[1]}, {16*CH}, v{vG[0]}")
    A(f"v_cndmask_b32 v{vEo[1]}, v15, v{vEo[1]}, vcc")
    A("s_mov_b64 s[94:95], vcc")
    A(f"s_and_b32 s{sEntO}, s2, 7")
    A(f"s_lshl_b32 s{sEntO}, s{sEntO}, 5")
    A(f"s_lshr_b32 s{sT+1}, s2, 3")
    A(f"s_or_b32 s{sEntO}, s{sEntO}, s{sT+1}")
    A(f"s_lshl_b32 s{sEntO}, s{sEntO}, 6")
    A(f"s_add_u32 s98, s{sEntO}, {PLN}")
    if o.epoll == 1: ent_load(0); ent_load(1)
    sort_init(True)
    if o.epoll == 2: ent_load(0); ent_load(1)
    A(f"s_mul_i32 s{sRecW}, s{sWave}, {CAPW}")
    A(f"s_mov_b32 s100, {HIST}")
    rec_consts()

def setup2():
    srd(sOUT, 48, 49, N * 1024)
    srd(sX, 32, 33, N * 1024)
    for q in range(D):
        A(f"s_add_u32 s{sSlot+q}, s{sRing}, {q*1024}")
    A(f"s_mov_b32 s101, {SHL}")
    A(f"s_mov_b32 s{sM1}, 0x0f0f0f0f\ns_mov_b32 s{sM1+1}, 0x0f0f0f0f")
    A(f"s_mov_b32 s{sM2}, 0xf0f0f0f0\ns_mov_b32 s{sM2+1}, 0xf0f0f0f0")
    A(f"s_mov_b32 s{sMode}, 0")
    A(f"s_mov_b32 s{sRound}, 0")
    A(f"v_bfe_u32 v{8}, v1, 2, 2")
    A(f"v_lshrrev_b32 v12, 4, v1")
    A(f"v_and_b32 v13, 3, v1")
    A(f"v_lshlrev_b32 v{vDMA}, 8, v{8}")
    A(f"v_lshl_add_u32 v{vDMA}, v12, 6, v{vDMA}")
    A(f"v_lshl_add_u32 v{vDMA}, v13, 4, v{vDMA}")
    A(f"v_lshrrev_b32 v14, 5, v1")
    A(f"v_lshl_add_u32 v{vTR}, v14, 8, s{sRing}")
    A(f"v_lshl_add_u32 v{vTR}, v{8}, 6, v{vTR}")
    A(f"v_and_b32 v15, 1, v12")
    A(f"v_lshl_add_u32 v{vTR}, v15, 5, v{vTR}")
    A(f"v_lshl_add_u32 v{vTR}, v13, 3, v{vTR}")
    A(f"v_lshlrev_b32 v{vKh}, 4, v14")
    A(f"v_add_u32 v{vKh}, {EAL}, v{vKh}")
    wave_addrs()
    for r in range(0, 48, 2): A(f"v_mov_b64 v[{ACC+r}:{ACC+r+1}], 0")
    for r in range(0, 8, 2): A(f"v_mov_b64 v[{A1+r}:{A1+r+1}], 0")

def producer():
    Q, d, sr, bb, rk = 128, 140, 144, 148, 152
    oA, oB = 156, 157
    A(f"s_or_b32 s{sT}, s2, s{sWave}")
    A("s_cbranch_scc1 L_nopub")
    A("s_lshl_b32 s62, s62, 3")
    A("s_or_b32 s62, s62, 0x80000000")
    A("v_mov_b32 v12, s62")
    A("v_mov_b32 v13, 0")
    A("s_mov_b64 exec, 1")
    A(f"buffer_store_dword v12, v13, s[{sWS}:{sWS+3}], 0 offen {SC}")
    A("s_mov_b64 exec, -1")
    A("L_nopub:")
    srd(sTMP, 36, 37, E * 4)
    A(f"buffer_load_dword v{d}, v{oA}, s[{sTMP}:{sTMP+3}], s72 offen")
    A("s_mov_b64 exec, 0xffff")
    A(f"buffer_load_dword v{d+1}, v{oB}, s[{sTMP}:{sTMP+3}], s72 offen")
    srd(sOUT, 34, 35, E * 4)
    srd(sSH, 38, 39, E * 8)
    A(f"buffer_load_dword v{sr+1}, v{oB}, s[{sOUT}:{sOUT+3}], s72 offen")
    A(f"v_lshlrev_b32 v13, 1, v{oB}")
    A("s_lshl_b32 s73, s72, 1")
    A(f"buffer_load_dwordx2 v[{Q+4}:{Q+5}], v13, s[{sSH}:{sSH+3}], s73 offen")
    A("s_mov_b64 exec, -1")
    A(f"buffer_load_dword v{sr}, v{oA}, s[{sOUT}:{sOUT+3}], s72 offen")
    A(f"v_lshlrev_b32 v13, 1, v{oA}")
    A(f"buffer_load_dwordx2 v[{Q}:{Q+1}], v13, s[{sSH}:{sSH+3}], s73 offen")
    A(f"s_cmp_lg_u32 s{sWave}, 0")
    A("s_cbranch_scc1 L_py")
    A("v_mov_b32 v12, 0")
    A(f"buffer_load_dword v{vN}, v12, s[{sWS}:{sWS+3}], 0 offen {SC}")
    A("L_py:")
    nw = 0
    if o.wpos == -1:
        wout_dma(); nw = 4
    if o.npx:
        if o.pref == 'x': srd(sX, 32, 33, N * 1024)
        else: srd(sX, 40, 41, E * 32)
        A(f"s_lshr_b32 s{sT}, s2, 3")
        A(f"s_sub_u32 s{sT+1}, s{sWave}, {8-o.npx}")
        A(f"s_mul_i32 s{sT+1}, s{sT+1}, 31")
        A(f"s_add_u32 s{sT}, s{sT}, s{sT+1}")
        A(f"s_lshl_b32 s{sT}, s{sT}, 13")
        A(f"s_cmp_lt_u32 s{sWave}, {8-o.npx}")
        A(f"s_cselect_b32 s{sT}, {N*1024 if o.pref == 'x' else E*32}, s{sT}")
        A("v_lshlrev_b32 v12, 7, v1")
        A(f"buffer_load_dword v228, v12, s[{sX}:{sX+3}], s{sT} offen")
        nw += 1
    A(f"v_lshl_or_b32 v{Q+2}, v0, 1, 1")
    A(f"v_lshrrev_b32 v{Q+6}, 1, v{oB}")
    A(f"v_or_b32 v{Q+6}, 1, v{Q+6}")
    A("s_movk_i32 s74, 40")
    A(f"s_mov_b32 s75, {CNT}")
    A(f"v_lshlrev_b32 v14, 4, v0")
    A("v_and_b32 v8, 3, v0")
    A("v_and_b32 v15, 0x1fc, v0")
    A("v_add_u32 v15, s75, v15")
    stamp(1)
    A("s_barrier")
    A(f"s_waitcnt vmcnt({4+nw})")
    for i in range(2):
        if i == 1: A("s_mov_b64 exec, 0xffff")
        A(f"v_mul_u32_u24 v12, 52429, v{d+i}")
        A(f"v_lshrrev_b32 v12, 21, v12")
        A("v_and_b32 v13, 7, v12")
        A(f"v_lshrrev_b32 v{bb+i}, 3, v12")
        A(f"v_lshl_or_b32 v{bb+i}, v13, 5, v{bb+i}")
        A(f"v_lshl_add_u32 v13, v{bb+i}, 2, s75")
        A(f"ds_add_rtn_u32 v{rk+i}, v13, v{vOne}")
        A(f"v_mul_u32_u24 v12, s74, v12")
        A(f"v_sub_u32 v12, v{d+i}, v12")
        A(f"v_lshl_or_b32 v{Q+4*i+2}, v12, 12, v{Q+4*i+2}")
        A(f"v_lshlrev_b32 v{bb+i}, 6, v{bb+i}")
    A("s_mov_b64 exec, -1")
    A(f"s_waitcnt vmcnt({nw})")
    A(f"s_cmp_lg_u32 s{sWave}, 0")
    A("s_cbranch_scc1 L_nre")
    A(f"v_readfirstlane_b32 s{sNon}, v{vN}")
    A("v_mov_b32 v12, 0")
    A(f"s_cmp_lg_u32 s{sNon}, 0")
    A("s_cbranch_scc1 L_nre")
    A(f"buffer_load_dword v{vN}, v12, s[{sWS}:{sWS+3}], 0 offen {SC}")
    A("L_nre:")
    for i in range(2):
        A(f"v_lshl_or_b32 v{Q+4*i+2}, v{sr+i}, 18, v{Q+4*i+2}")
    A("s_waitcnt lgkmcnt(0)")
    for i in range(2):
        A(f"v_lshrrev_b32 v12, 2, v{rk+i}")
        A(f"v_and_b32 v13, 3, v{rk+i}")
        A(f"v_lshl_add_u32 v{bb+i}, v12, 14, v{bb+i}")
        A(f"v_cmp_gt_u32 vcc, 16, v{rk+i}")
        A(f"v_lshl_add_u32 v{bb+i}, v13, 4, v{bb+i}")
        A("s_mov_b64 exec, vcc" if i == 0 else "s_and_b64 exec, vcc, 0xffff")
        A(f"ds_write_b96 v{bb+i}, v[{Q+4*i}:{Q+4*i+2}]")
        A("s_mov_b64 exec, -1")
    A(f"s_cmp_lg_u32 s{sWave}, 0")
    A("s_cbranch_scc1 L_non_done")
    A(f"s_cmp_lg_u32 s{sNon}, 0")
    A("s_cbranch_scc1 L_non_okp")
    nonce_wait("p")
    A("L_non_done:")
    srd(sWS, 60, 61, WS_BYTES)
    A(f"s_mul_i32 s72, s2, {GST}")
    A("s_add_u32 s73, s72, 8192")
    A("s_waitcnt lgkmcnt(0)")
    A("s_barrier")
    stamp(2)
    C, T0 = 64, 68
    A(f"ds_read_b32 v13, v{vFlag} offset:4")
    for q in range(2):
        A(f"ds_read_b32 v{C+q}, v15 offset:{q*512}")
        A(f"ds_read_b96 v[{T0+4*q}:{T0+4*q+2}], v14 offset:{q*8192}")
    for q in range(2):
        A(f"ds_read_b96 v[{T0+8+4*q}:{T0+8+4*q+2}], v14 offset:{16384 + q*8192}")
    A("s_waitcnt lgkmcnt(6)")
    A(f"v_readfirstlane_b32 s{sNon}, v13")
    A(f"s_cmp_eq_u32 s{sNon}, 0")
    A("s_cbranch_scc1 L_nostore")
    for q in range(2):
        A(f"s_waitcnt lgkmcnt({4 - 2*q})")
        A(f"v_cmp_lt_u32 vcc, v8, v{C+q}")
        A(f"v_max_u32 v13, 1, v{C+q}")
        A(f"v_add_u32 v13, -1, v13")
        A(f"v_cndmask_b32 v{T0+4*q+2}, 0, v{T0+4*q+2}, vcc")
        A(f"v_lshrrev_b32 v13, 2, v13")
        A(f"v_min_u32 v13, 4, v13")
        A(f"v_or_b32 v{T0+4*q+3}, s{sNon}, v13")
        A(f"buffer_store_dwordx4 v[{T0+4*q}:{T0+4*q+3}], v14, s[{sWS}:{sWS+3}], s{72+q} offen {SC}")
    def plane(k, R):
        A("v_add_u32 v8, 4, v8")
        A(f"s_add_u32 s72, s72, {PLN}")
        A(f"s_add_u32 s73, s73, {PLN}")
        A("s_waitcnt lgkmcnt(0)")
        for q in range(2):
            A(f"v_cmp_lt_u32 vcc, {4*k}, v{C+q}")
            A(f"v_cmp_lt_u32 s[64:65], v8, v{C+q}")
            A(f"v_mov_b32 v{R+4*q+3}, s{sNon}")
            A("s_mov_b64 exec, vcc")
            A(f"s_cbranch_execz L_n{k}{q}")
            A(f"v_cndmask_b32 v{R+4*q+2}, 0, v{R+4*q+2}, s[64:65]")
            A(f"buffer_store_dwordx4 v[{R+4*q}:{R+4*q+3}], v14, s[{sWS}:{sWS+3}], s{72+q} offen {SC}")
            A(f"L_n{k}{q}:")
            A("s_mov_b64 exec, -1")
    plane(1, T0 + 8)
    A(f"v_max_u32 v13, v{C}, v{C+1}")
    A("v_cmp_lt_u32 vcc, 8, v13")
    A("s_cmp_eq_u64 vcc, 0")
    A("s_cbranch_scc1 L_nostore")
    for q in range(4):
        A(f"ds_read_b96 v[{164+4*q}:{164+4*q+2}], v14 offset:{32768 + q*8192}")
    plane(2, 164)
    plane(3, 172)
    A("L_nostore:")
    A("s_waitcnt lgkmcnt(0)")
    A("s_barrier")

def kernel():
    A(f".globl {KN}\n.p2align 8\n.type {KN},@function\n{KN}:")
    A(f"s_cmp_ge_u32 s2, {NB}")
    A("s_cbranch_scc1 L_main_end")
    stamp(0)
    A("s_load_dwordx16 s[32:47], s[0:1], 0")
    A("s_load_dwordx4 s[48:51], s[0:1], 64")
    A("s_load_dwordx2 s[60:61], s[0:1], 80")
    A("s_memrealtime s[62:63]")
    A("v_lshrrev_b32 v11, 6, v0")
    A("v_and_b32 v1, 63, v0")
    A(f"v_readfirstlane_b32 s{sWave}, v11")
    if o.cpf:
        A(f"s_cmp_lg_u32 s{sWave}, 2")
        A("s_cbranch_scc1 L_nocpf")
        A("s_getpc_b64 s[4:5]")
        A("L_pc:")
        A("v_lshlrev_b32 v12, 7, v1")
        A("v_mov_b32 v13, s5")
        A("v_add_co_u32 v12, vcc, s4, v12")
        A("s_nop 1")
        A("v_addc_co_u32 v13, vcc, 0, v13, vcc")
        A("global_load_dword v236, v[12:13], off")
        A("v_add_co_u32 v12, vcc, 0x2000, v12")
        A("s_nop 1")
        A("v_addc_co_u32 v13, vcc, 0, v13, vcc")
        A("v_cmp_gt_u32 vcc, (L_main_end-L_pc-0x2000)/128, v1")
        A("s_mov_b64 exec, vcc")
        A("global_load_dword v237, v[12:13], off")
        A("s_mov_b64 exec, -1")
        A("L_nocpf:")
    A(f"v_lshlrev_b32 v{vL16}, 4, v1")
    A(f"v_mov_b64 v[{vT}:{vT+1}], 0")
    A(f"v_mov_b32 v{vFlag}, {FLAG}")
    A(f"ds_write_b32 v{vFlag}, v{vT}")
    A(f"ds_write_b64 v{vFlag}, v[{vT}:{vT+1}] offset:8")
    A(f"v_lshlrev_b32 v12, 2, v0")
    A(f"v_add_u32 v12, {CNT}, v12")
    A(f"ds_write_b32 v12, v{vT}")
    A(f"s_lshl_b32 s{sRing}, s{sWave}, 13")
    A(f"s_mul_i32 s72, s2, {CH*4}")
    A(f"v_lshlrev_b32 v156, 2, v0")
    A(f"s_lshl_b32 s{sT}, s{sWave}, 6")
    A(f"s_add_u32 s{sT}, s{sT}, 2048")
    A(f"v_lshl_add_u32 v157, v1, 2, s{sT}")
    A(f"v_mov_b32 v{vOne}, 1")
    A("s_waitcnt lgkmcnt(0)")
    srd(sWS, 50, 51, 256)
    producer()
    stamp(3)
    if o.wpos == 0: wout_dma()
    small_dma()
    srd(sEA, 40, 41, E * 32)
    setup()
    stamp(4)
    if o.epoll == 0: ent_load(0); ent_load(1)
    if o.s2pos == 0: setup2()
    A("s_waitcnt lgkmcnt(0)")
    A("s_barrier")
    A(f"s_movk_i32 s{sRem}, {SPIN}")
    stamp(5)
    stamp(6)
    A(f"s_cmp_eq_u32 s{sNon}, 0")
    A("s_cbranch_scc1 L_ent_to")
    A("L_ent_chk:")
    A("s_waitcnt vmcnt(0)")
    A(f"v_xor_b32 v{vT+30}, s{sNon}, v{pc(0)+3}")
    A(f"v_xor_b32 v{vT+31}, s{sNon}, v{pc(1)+3}")
    A(f"v_cmp_lt_u32 s[40:41], 7, v{vT+30}")
    A(f"v_cmp_lt_u32 s[42:43], 7, v{vT+31}")
    A("s_and_b64 s[42:43], s[42:43], s[94:95]")
    A("s_or_b64 vcc, s[40:41], s[42:43]")
    A("s_cbranch_scc0 L_ent_ok")
    A(f"s_sub_u32 s{sRem}, s{sRem}, 1")
    A("s_cbranch_scc1 L_ent_to")
    if o.sleep: A(f"s_sleep {o.sleep}")
    for h in range(2):
        A(f"s_mov_b64 exec, s[{40+2*h}:{41+2*h}]")
        A(f"s_cbranch_execz L_er{h}")
        ent_load(h)
        A(f"L_er{h}:")
    A("s_mov_b64 exec, -1")
    A("s_branch L_ent_chk")
    A("L_ent_to:")
    A("s_waitcnt vmcnt(0)")
    A(f"ds_write_b32 v{vFlag}, v{vOne}")
    A(f"v_mov_b32 v{pc(0)+2}, 0")
    A(f"v_mov_b32 v{pc(1)+2}, 0")
    A(f"v_mov_b64 v[{vT+30}:{vT+31}], 0")
    A("L_ent_ok:")
    if o.stamps: A(f"v_writelane_b32 v{vST}, s{sRem}, 21")
    stamp(7)
    A(f"v_cndmask_b32 v{vT+31}, 0, v{vT+31}, s[94:95]")
    A(f"s_mov_b32 s{sNw}, 0")
    A(f"s_mov_b32 s{sG2}, 0")
    A(f"v_cmp_ne_u32 s[40:41], 0, v{vT+30}")
    A(f"v_cmp_ne_u32 s[42:43], 0, v{vT+31}")
    for h in range(2):
        A(f"s_mov_b64 exec, s[{40+2*h}:{41+2*h}]")
        A(f"s_cbranch_execz L_e1{h}")
        ent_load(2 + h)
        A(f"s_mov_b32 s{sG2}, 1")
        A(f"L_e1{h}:")
    A("s_mov_b64 exec, -1")
    p1a([0, 1])
    for m in range(o.nf):
        A(f"ds_read_b32 v{vT+16+m}, v{vFl} offset:{m*128}")
    p1b([0, 1], True)
    A("s_waitcnt lgkmcnt(4)")
    for m in range(o.nf): rec_dma(m, "f", False)
    if o.s2pos == 1: setup2()
    A(f"s_cmp_eq_u32 s{sG2}, 0")
    A("s_cbranch_scc1 L_noext")
    A(f"s_max_u32 s{sNw}, s{sNw}, {32*o.nf}")
    A(f"s_waitcnt vmcnt({o.nf})")
    ext_group(1)
    for g in (2, 3):
        A(f"v_cmp_lt_u32 s[40:41], {g-1}, v{vT+30}")
        A(f"v_cmp_lt_u32 s[42:43], {g-1}, v{vT+31}")
        A("s_or_b64 vcc, s[40:41], s[42:43]")
        A("s_cbranch_scc0 L_noext")
        A(f"s_mov_b32 s{sG2}, {g}")
        A(f"s_add_u32 s98, s98, {PLN}")
        A(f"v_mov_b32 v{pc(2*g)+3}, 0")
        A(f"v_mov_b32 v{pc(2*g+1)+3}, 0")
        ext_group(g)
    A(f"v_max_u32 v{vT}, v{vT+30}, v{vT+31}")
    A(f"v_cmp_eq_u32 vcc, 4, v{vT}")
    A("s_mov_b64 exec, vcc")
    A(f"ds_write_b32 v{vFlag}, v{vOne}")
    A("s_mov_b64 exec, -1")
    A("L_noext:")
    for m in range(o.nf, 5):
        A(f"ds_read_b32 v{vT+16+m}, v{vFl} offset:{m*128}")
    A(f"s_cmp_le_u32 s{sNw}, {CAPW}")
    A("s_cbranch_scc1 L_nwok")
    A(f"ds_write_b32 v{vFlag}, v{vOne}")
    A("L_nwok:")
    if o.sched[0]:
        A("s_waitcnt lgkmcnt(0)")
        for m in o.sched[0]: rec_dma(m, "f")
    sort_rest(True, "f")
    A("L_sweep:")
    idx_reads(0, 0)
    A("s_waitcnt lgkmcnt(0)")
    for e in range(D + 1):
        A(f"v_readlane_b32 s{sE+e}, v{ENT[0]}, {e}")
    for e in range(D - 1):
        dma_x(e)
    stamp(17)
    A(f"s_cmp_lg_u32 s{sRound}, 0")
    A("s_cbranch_scc1 L_nosf")
    small_frags()
    epi_addrs()
    A("s_mov_b32 s44, 0x05040100")
    A("s_mov_b32 s45, 0x07060302")
    A("L_nosf:")
    stamp(18)
    A(f"s_waitcnt vmcnt({D-1})")
    stamp(19)
    A("s_barrier")
    stamp(23)
    A("s_setprio 2")
    rec_reads()
    dma_x(D - 1)
    A(f"s_sub_u32 s{sRem}, s{sCnt}, 1")
    A("s_cbranch_scc1 L_sweep_done")
    A(f"s_waitcnt vmcnt({D-1})")
    tr_reads(0)
    A("s_waitcnt lgkmcnt(2)")
    for h in range(2):
        for u in range(4): am_dot(u, h)
    for q in range(4): rw_mfma(q)
    am_cvt()
    A(f"s_waitcnt vmcnt({D-2})")
    tr_reads(1)
    A("s_waitcnt lgkmcnt(2)")
    tp_mfma(0)
    dma_x(D)
    stamp(10)
    A("L_loop:")
    for j in range(16):
        A(f"; ---- step {j}")
        A(f"s_waitcnt vmcnt({o.vm})")
        tr_reads(j + 2)
        A(f"v_readlane_b32 s{sE + (j + D + 1) % 16}, v{ENT[0]}, {j + D + 1}")
        A(f"s_waitcnt lgkmcnt({5 if j in (1, 4) else 2})")
        if j == 15:
            am_cvt()
            A(f"v_mov_b32 v{ENT[0]}, v{ENT[1]}")
            A("s_nop 0")
        tp_mfma(j + 1)
        dma_x(j + D + 1)
        if j == 0:
            idx_reads(1, 128)
            A(f"v_add_u32 v{vEntA}, 128, v{vEntA}")
            A(f"v_add_u32 v{vRiA}, 128, v{vRiA}")
            A(f"v_add_u32 v{vRiB}, 128, v{vRiB}")
        if j == 3:
            rec_reads()
        if j == 6:
            A(f"s_cmp_ge_u32 s{sWo}, 16")
            A("s_cbranch_scc1 L_nowb")
            wo_block()
            A("L_nowb:")
        if j == 8:
            for u in range(4): am_dot(u, 0)
        if j == 9:
            for u in range(4): am_dot(u, 1)
        fmas(j)
        A(f"s_sub_u32 s{sRem}, s{sRem}, 1")
        A("s_cbranch_scc1 L_sweep_done")
        if j == 15:
            for q in range(4): rw_mfma(q)
            A("s_branch L_loop")
    A("L_sweep_done:")
    A(f"s_cmp_lg_u32 s{sMode}, 0")
    A("s_cbranch_scc1 L_slownext")
    A("L_epi:")
    A("s_setprio 0")
    stamp(11)
    for k in range(5):
        for H in range(2):
            a = ACC + 8 * k + 4 * H
            t = 64 + (k * 2 + H) * 2
            A(f"v_cvt_pk_bf16_f32 v{t}, v{a}, v{a+1}")
            A(f"v_cvt_pk_bf16_f32 v{t+1}, v{a+2}, v{a+3}")
    A("s_waitcnt vmcnt(0)")
    for k in range(5):
        for H in range(2):
            t = 64 + (k * 2 + H) * 2
            A(f"ds_write_b64 v{eT}, v[{t}:{t+1}] offset:{H*64*48 + k*8}")
    A("s_mov_b64 exec, 1")
    A(f"ds_add_u32 v{eC}, v{vOne}")
    A("s_mov_b64 exec, -1")
    A(f"s_mul_i32 s{sT}, s2, {NPB*1024}")
    for u in range(3):
        A(f"ds_read_b32 v{eO+u}, v{eN} offset:{u*8}")
    A(f"s_cmp_lt_u32 s{sWo}, 16")
    A("s_cbranch_scc1 L_wfin")
    A("L_gw:")
    A(f"ds_read_b32 v15, v{eC}")
    A("s_waitcnt lgkmcnt(0)")
    A("v_readfirstlane_b32 s43, v15")
    A("s_cmp_ge_u32 s43, 4")
    A("s_cbranch_scc1 L_gok")
    A("s_sleep 1")
    A("s_branch L_gw")
    A("L_gok:")
    stamp(12)
    def breads(u):
        for s in range(4):
            for tt in range(2):
                r = 16 + u * 16 + s * 4 + 2 * tt
                A(f"ds_read_b64_tr_b16 v[{r}:{r+1}], v{eR} offset:{u*16 + (32*s + 4*tt)*48}")
    def fins(uf):
        df = 64 + uf * 16
        oo = 112 + uf * 8
        return [[f"v_cvt_pk_bf16_f32 v{oo+2*r}, v{df+r}, v{df+4+r}",
                 f"v_cvt_pk_bf16_f32 v{oo+2*r+1}, v{df+8+r}, v{df+12+r}",
                 f"buffer_store_dwordx2 v[{oo+2*r}:{oo+2*r+1}], v{eO+uf}, s[{sOUT}:{sOUT+3}], s{sT} offen offset:{r*256} {o.stfl}"] for r in range(4)]
    def mmf(u, uf):
        d = 64 + u * 16
        fl = fins(uf) if uf is not None else []
        n = 0
        for s in range(4):
            for a in range(4):
                b = 16 + u * 16 + s * 4
                w = WO + (a * 4 + s) * 4
                c = "0" if s == 0 else f"v[{d+4*a}:{d+4*a+3}]"
                A(f"v_mfma_f32_16x16x32_bf16 v[{d+4*a}:{d+4*a+3}], v[{b}:{b+3}], v[{w}:{w+3}], {c}")
                n += 1
                if fl and n >= 8 and n % 2 == 0:
                    for x in fl.pop(0): A(x)
    def fin(u):
        for g in fins(u):
            for x in g: A(x)
    breads(0)
    breads(1)
    for u in range(3):
        A(f"v_lshl_add_u32 v{eO+u}, v{eO+u}, 10, v{eN+1}")
    A("s_waitcnt lgkmcnt(8)")
    breads(2)
    mmf(0, None)
    A("s_waitcnt lgkmcnt(8)")
    mmf(1, 0)
    A(f"s_cmp_lg_u32 s62, 0")
    A("s_cbranch_scc1 L_epi2")
    A("s_waitcnt lgkmcnt(0)")
    mmf(2, 1)
    A("s_nop 7")
    fin(2)
    A("s_branch L_epi3")
    A("L_epi2:")
    A("s_nop 7")
    fin(1)
    A("L_epi3:")
    if o.stamps:
        stamp(13)
        A("s_waitcnt vmcnt(0)")
        stamp(14)
        A(f"v_writelane_b32 v{vST}, s{sCnt}, 20")
        srd(sWS, 60, 61, 0x10000000)
        A(f"s_lshl_b32 s{sT}, s2, 3")
        A(f"s_add_u32 s{sT}, s{sT}, s{sWave}")
        A(f"s_lshl_b32 s{sT}, s{sT}, 8")
        A(f"s_add_u32 s{sT}, s{sT}, 0x8000000")
        A("v_lshlrev_b32 v7, 2, v1")
        A(f"buffer_store_dword v{vST}, v7, s[{sWS}:{sWS+3}], s{sT} offen")
    A("L_main_end:")
    A("s_endpgm")
    A("L_wfin:")
    wo_block()
    A(f"s_cmp_lt_u32 s{sWo}, 16")
    A("s_cbranch_scc1 L_wfin")
    A("s_branch L_gw")
    A("L_slownext:")
    A(f"s_add_u32 s{sRound}, s{sRound}, 1")
    A(f"s_cmp_ge_u32 s{sRound}, {E // CAPL}")
    A("s_cbranch_scc1 L_epi")
    A("s_branch L_slowload")
    A("L_goslow:")
    A(f"s_mov_b32 s{sMode}, 1")
    o.pcb = 228
    A("L_slowload:")
    A("s_waitcnt vmcnt(0) lgkmcnt(0)")
    A("s_barrier")
    wave_addrs()
    A(f"s_mul_i32 s{sT}, s{sRound}, {CAPL}")
    A(f"v_add_u32 v{vG[0]}, s{sT}, v0")
    A(f"v_lshlrev_b32 v{vT+23}, 2, v{vG[0]}")
    A(f"v_lshlrev_b32 v{vT+24}, 3, v{vG[0]}")
    srd(sTMP, 36, 37, E * 4)
    A(f"buffer_load_dword v{vT+21}, v{vT+23}, s[{sTMP}:{sTMP+3}], 0 offen")
    srd(sTMP, 34, 35, E * 4)
    A(f"buffer_load_dword v{vT+22}, v{vT+23}, s[{sTMP}:{sTMP+3}], 0 offen")
    A(f"buffer_load_dwordx2 v[{pc(0)}:{pc(0)+1}], v{vT+24}, s[{sSH}:{sSH+3}], 0 offen")
    sort_init(False)
    rec_consts()
    A(f"s_mul_i32 s{sT}, s2, {NPB}")
    A("s_waitcnt vmcnt(0)")
    A(f"v_subrev_u32 v{vT+21}, s{sT}, v{vT+21}")
    A(f"v_lshl_or_b32 v{vT+22}, v{vT+22}, 18, 1")
    A(f"v_lshl_or_b32 v{pc(0)+2}, v{vT+21}, 12, v{vT+22}")
    A(f"v_cmp_gt_u32 vcc, {NPB}, v{vT+21}")
    A(f"s_movk_i32 s{sT}, {CAPL}")
    A(f"v_cmp_gt_u32 s[40:41], s{sT}, v0")
    A("s_nop 1")
    A("s_and_b64 vcc, vcc, s[40:41]")
    A("s_nop 1")
    A(f"v_cndmask_b32 v{pc(0)+2}, 0, v{pc(0)+2}, vcc")
    A(f"s_mov_b32 s{sNw}, 0")
    A("s_waitcnt lgkmcnt(0)")
    A("s_barrier")
    p1a([0])
    for m in range(2):
        A(f"ds_read_b32 v{vT+16+m}, v{vFl} offset:{m*128}")
    p1b([0], False)
    A("s_waitcnt lgkmcnt(0)")
    rec_dma(0, "s"); rec_dma(1, "s")
    sort_rest(False, "s")
    A("s_branch L_sweep")

def build(path, stamps=False, vm=5, stfl='sc0 sc1', sleep=0, pat=(0, 2, 3, 1, 7), cpf=1, late=1, wpos=-1, nph=5, pref='x', nf=1, sched=([1], [], [], [2, 3, 4]), epoll=0, s2pos=0, npx=0):
    o.npx = npx
    o.s2pos = s2pos
    o.nf, o.sched, o.epoll = nf, sched, epoll
    global L
    o.pcb = PC
    o.nph, o.pref = nph, pref
    o.stamps, o.vm, o.stfl, o.sleep, o.cpf, o.late, o.wpos = stamps, vm, stfl, sleep, cpf, late, wpos
    o.pattern = sum(x << (4 * i) for i, x in enumerate(pat))
    L = []
    A(f"; @launch grid=({NB},1,1) block=(512,1,1) lds={LDS_MAIN}")
    A('.amdgcn_target "amdgcn-amd-amdhsa--gfx950"')
    A(".text")
    kernel()
    A('.section .rodata,"a"')
    A(".p2align 6")
    A(desc(KN, NVG, 102))
    open(path, "w").write("\n".join(L) + "\n")

if __name__ == "__main__":
    build("j0.s")
    for n in (1, 2, 3, 4, 6):
        build(f"j{n}.s", npx=n)
    build("j7.s", npx=3, wpos=0)
    build("j8.s", npx=3, pref='ea')
```

```python
import sys

KN = "gather_scatter__tensor_product_equiv_mace__graph_kernel"
N, E = 10000, 160000
NB, NPB = 250, 40
G1, CH = 250, 640
GST = 16384 + 128
PLN = G1 * GST
WS_BYTES = 4 * PLN
CAPW = 144
CAPL = 128
D = 8
EAL = 65536
SHL = EAL + 8 * CAPW * 32
LSTRIDE = 160 * 8
LIST = SHL + 8 * CAPW * 8
HIST = LIST + 8 * LSTRIDE
DEG = HIST + 40 * 160
NODE = DEG + 256
FLAG = NODE + 256
WOL = FLAG + 16 + 48
LDS_MAIN = WOL + 32768
PADW = (N << 10) | 40
PADE = 0x00FFFFFF
CNT = 65536
SPIN = 4000
SC = "sc1"

L = []
def A(s): L.append(s)

class O: pass
o = O()
vST = 250
def stamp(n):
    if not o.stamps: return
    A("s_memrealtime s[4:5]")
    A("s_waitcnt lgkmcnt(0)")
    A(f"v_writelane_b32 v{vST}, s4, {n}")

def srd(d, lo, hi, nbytes):
    A(f"s_mov_b32 s{d}, s{lo}")
    A(f"s_mov_b32 s{d+1}, s{hi}")
    A(f"s_mov_b32 s{d+2}, {nbytes}")
    A(f"s_mov_b32 s{d+3}, 0x20000")

def desc(name, nvg, nsg):
    return (f".amdhsa_kernel {name}\n  .amdhsa_next_free_vgpr {nvg}\n  .amdhsa_next_free_sgpr {nsg}\n"
            f"  .amdhsa_accum_offset {(nvg+3)//4*4}\n  .amdhsa_group_segment_fixed_size 0\n  .amdhsa_kernarg_size 88\n"
            f"  .amdhsa_user_sgpr_count 2\n  .amdhsa_user_sgpr_kernarg_segment_ptr 1\n  .amdhsa_system_sgpr_workgroup_id_x 1\n"
            f"  .amdhsa_float_denorm_mode_32 3\n.end_amdhsa_kernel")

def dpp_scan(v):
    for sh in (1, 2, 4, 8):
        A("s_nop 1")
        A(f"v_add_u32_dpp v{v}, v{v}, v{v} row_shr:{sh} row_mask:0xf bank_mask:0xf bound_ctrl:0")
    A("s_nop 1")
    A(f"v_add_u32_dpp v{v}, v{v}, v{v} row_bcast:15 row_mask:0xa bank_mask:0xf")
    A("s_nop 1")
    A(f"v_add_u32_dpp v{v}, v{v}, v{v} row_bcast:31 row_mask:0xc bank_mask:0xf")

ACC = 16
RW = 64
WR = 96
A1, A2 = 112, 116
CG = 120
SHV = 128
AMF = 130
AM = 134
XB = [136, 140]
TP = [144, 152]
ENT = [160, 161]
vRA, vRB = 162, 163
WO = 164
NVG = 252
vDMA, vTR, vEntA, vRiA, vRiB, vKh = 2, 3, 4, 5, 6, 7
vFlag, vOne, v64 = 9, 10, 11
sX, sEA, sSH, sWS, sOUT, sTMP = 8, 12, 16, 20, 24, 28
sWave, sRing, sRem, sCnt, sRound, sMode, sNw, sG2, sRecW = 3, 52, 53, 54, 55, 56, 57, 58, 59
sEaW, sShW = 96, 97
sE = 64
sT = 80
sM1, sM2 = 82, 84
sSlot = 86
sNon, sEntO = 6, 7
PC = 180
def pc(i): return o.pcb + 4 * i
vKey, vRank, vB = 64, 72, 80
vG = [88, 89]
vEo = [90, 91]
vP3, vFl = 92, 94
vT = 128
vL16, vN = 212, 238
eT, eR, eC, eO, eN = 244, 245, 247, 12, 248
def mk(i): return 64 + 2 * i

def sort_init(first):
    A(f"v_mov_b64 v[{vT}:{vT+1}], 0")
    A(f"v_mov_b64 v[{vT+2}:{vT+3}], 0")
    A(f"v_min_u32 v{vT+6}, 399, v0")
    A(f"v_lshlrev_b32 v{vT+6}, 4, v{vT+6}")
    A(f"v_add_u32 v{vT+6}, {HIST}, v{vT+6}")
    A(f"ds_write_b128 v{vT+6}, v[{vT}:{vT+3}]")
    A(f"v_lshlrev_b32 v{vT+5}, 2, v1")
    if first:
        A(f"v_add_u32 v{vT+7}, {DEG}, v{vT+5}")
        A(f"ds_write_b32 v{vT+7}, v1")
    A(f"v_mov_b32 v{vT+4}, {PADE}")
    A(f"v_add_u32 v{vT+5}, s{sRing}, v{vT+5}")
    for q in range(3):
        A(f"ds_write_b32 v{vT+5}, v{vT+4} offset:{q*256}")
    A(f"v_mov_b32 v{vT+8}, {PADW}")
    A(f"v_mov_b32 v{vT+9}, 0")
    A(f"v_mov_b64 v[{vT+10}:{vT+11}], v[{vT+8}:{vT+9}]")
    A(f"v_lshlrev_b32 v{vT+7}, 4, v0")
    A(f"v_add_u32 v{vT+7}, {LIST}, v{vT+7}")
    A(f"ds_write_b128 v{vT+7}, v[{vT+8}:{vT+11}]")
    A(f"ds_write_b128 v{vT+7}, v[{vT+8}:{vT+11}] offset:2048")
    A(f"v_mov_b32 v{v64}, 64")

def rec_dma(m, tag, cond=True):
    if cond:
        A(f"s_cmp_le_u32 s{sNw}, {32*m}")
        A(f"s_cbranch_scc1 L_rd_{tag}{m}")
    if m == 4: A("s_mov_b32 exec_hi, 0")
    A(f"s_add_u32 m0, s{sEaW}, {m*1024}")
    A(f"v_lshl_add_u32 v{vT+26}, v{vT+16+m}, 5, v{vP3}")
    A(f"buffer_load_dwordx4 v{vT+26}, s[{sEA}:{sEA+3}], 0 offen lds")
    if m == 4: A("s_mov_b32 exec_hi, -1")
    if cond: A(f"L_rd_{tag}{m}:")

def ent_load(i, first=False):
    so = sEntO if i < 2 else 98
    fl = o.ffl if first else SC
    A(f"buffer_load_dwordx4 v[{pc(i)}:{pc(i)+3}], v{vEo[i%2]}, s[{sWS}:{sWS+3}], s{so} offen {fl}")

def p1a(ids):
    for i in ids:
        A(f"v_and_b32 v{vT}, 1, v{pc(i)+2}")
        A(f"v_cmp_ne_u32 s[{mk(i)}:{mk(i)+1}], 0, v{vT}")
        A(f"v_bfe_u32 v{vT+2+i%2}, v{pc(i)+2}, 1, 10")
        A(f"v_add_u32 v{vT+2+i%2}, v{vT+2+i%2}, v{vG[i%2]}")
    for i in ids:
        A(f"v_mov_b32 v{vB+i}, s{sNw}")
        A(f"v_mbcnt_lo_u32_b32 v{vB+i}, s{mk(i)}, v{vB+i}")
        A(f"v_mbcnt_hi_u32_b32 v{vB+i}, s{mk(i)+1}, v{vB+i}")
        A(f"s_bcnt1_i32_b64 s{sT}, s[{mk(i)}:{mk(i)+1}]")
        A(f"s_add_u32 s{sNw}, s{sNw}, s{sT}")
        A(f"v_lshl_add_u32 v{vT+4+i%2}, v{vB+i}, 2, s{sRing}")
        A(f"v_min_u32 v{vB+i}, {CAPW-1}, v{vB+i}")
        A(f"v_lshl_add_u32 v{vT+6+i%2}, v{vB+i}, 3, s{sShW}")
    for i in ids:
        A(f"s_mov_b64 exec, s[{mk(i)}:{mk(i)+1}]")
        A(f"ds_write_b32 v{vT+4+i%2}, v{vT+2+i%2}")
        A(f"ds_write_b64 v{vT+6+i%2}, v[{pc(i)}:{pc(i)+1}]")
    A("s_mov_b64 exec, -1")

def p1b(ids, first):
    for i in ids:
        A(f"v_bfe_u32 v{vT+8+i%2}, v{pc(i)+2}, 12, 6")
        A(f"v_lshrrev_b32 v{vKey+i}, 26, v{pc(i)+2}")
        if o.rot:
            A(f"v_subrev_u32 v{vKey+i}, s99, v{vKey+i}")
            A(f"v_add_u32 v{vT+10}, 40, v{vKey+i}")
            A(f"v_min_u32 v{vKey+i}, v{vKey+i}, v{vT+10}")
        A(f"v_mad_u32_u24 v{vKey+i}, v{vT+8+i%2}, 40, v{vKey+i}")
        A(f"v_lshl_add_u32 v{vKey+i}, v{vKey+i}, 2, s100")
        A(f"v_lshl_add_u32 v{vT+8+i%2}, v{vT+8+i%2}, 2, s100")
        A(f"v_add_u32 v{vB+i}, s{sRecW}, v{vB+i}")
    for i in ids:
        A(f"s_mov_b64 exec, s[{mk(i)}:{mk(i)+1}]")
        if first: A(f"ds_add_u32 v{vT+8+i%2}, v{v64} offset:{DEG-HIST}")
        A(f"ds_add_rtn_u32 v{vRank+i}, v{vKey+i}, v{vOne}")
    A("s_mov_b64 exec, -1")

def ext_group(g):
    A(f"s_movk_i32 s{sRem}, {SPIN}")
    A(f"s_branch L_x{g}_chk")
    A(f"L_x{g}_again:")
    for h in range(2):
        A(f"s_mov_b64 exec, s[{40+2*h}:{41+2*h}]")
        A(f"s_cbranch_execz L_x{g}_s{h}")
        ent_load(2 * g + h)
        A(f"L_x{g}_s{h}:")
    A("s_mov_b64 exec, -1")
    A("s_waitcnt vmcnt(0)")
    A(f"L_x{g}_chk:")
    A(f"v_cmp_ne_u32 vcc, s{sNon}, v{pc(2*g)+3}")
    A(f"v_cmp_ne_u32 s[44:45], s{sNon}, v{pc(2*g+1)+3}")
    A("s_and_b64 vcc, vcc, s[40:41]")
    A("s_and_b64 s[44:45], s[44:45], s[42:43]")
    A("s_or_b64 vcc, vcc, s[44:45]")
    A(f"s_cbranch_scc0 L_x{g}_ok")
    A(f"s_sub_u32 s{sRem}, s{sRem}, 1")
    A(f"s_cbranch_scc0 L_x{g}_again")
    A(f"ds_write_b32 v{vFlag}, v{vOne}")
    A("s_mov_b64 s[40:41], 0")
    A("s_mov_b64 s[42:43], 0")
    A(f"L_x{g}_ok:")
    for h in range(2):
        A(f"v_cndmask_b32 v{pc(2*g+h)+2}, 0, v{pc(2*g+h)+2}, s[{40+2*h}:{41+2*h}]")
    p1a([2 * g, 2 * g + 1])
    p1b([2 * g, 2 * g + 1], True)

def per_group(first, body, tag):
    if not first:
        body([0]); return
    body([0, 1])
    for g in (1, 2, 3):
        A(f"s_cmp_lt_u32 s{sG2}, {g}")
        A(f"s_cbranch_scc1 L_{tag}")
        body([2 * g, 2 * g + 1])
    A(f"L_{tag}:")

def sort_rest(first, tag):
    A("s_waitcnt lgkmcnt(0)")
    A("s_barrier")
    if first: stamp(8)
    if first and o.reset:
        A(f"s_or_b32 s{sT}, s2, s{sWave}")
        A("s_cbranch_scc1 L_noreset")
        srd(sTMP, 50, 51, 256)
        A(f"v_mov_b32 v{vT}, 0")
        A("s_mov_b64 exec, 1")
        A(f"buffer_store_dword v{vT}, v{vT}, s[{sTMP}:{sTMP+3}], 0 offen {SC}")
        A("s_mov_b64 exec, -1")
        A("L_noreset:")
    A(f"v_lshlrev_b32 v{vT}, 2, v1")
    A(f"v_add_u32 v{vT}, {HIST}, v{vT}")
    if first:
        A(f"ds_read_b32 v{vT+1}, v{vT} offset:{DEG-HIST}")
        A(f"s_mul_i32 s{sT+1}, s{sWave}, 5")
        A(f"v_add_u32 v{vT+3}, s{sT+1}, v1")
        A("s_mov_b32 exec_hi, 0xff")
        A("s_waitcnt lgkmcnt(0)")
        for k in range(5):
            A(f"v_readlane_b32 s{40+k}, v{vT+1}, s{sT+1}")
            A(f"s_add_u32 s{sT+1}, s{sT+1}, 1")
        for k in range(5):
            A(f"v_cmp_lt_u32 vcc, s{40+k}, v{vT+1}")
            A(f"s_bcnt1_i32_b64 s{40+k}, vcc")
        for k in range(5):
            A(f"v_writelane_b32 v{vT+2}, s{40+k}, {k}")
        A("s_mov_b64 exec, 0x1f")
        A(f"v_lshrrev_b32 v{vT+4}, 3, v{vT+2}")
        A(f"v_lshlrev_b32 v{vT+5}, 2, v{vT+4}")
        A(f"s_mov_b32 s40, {o.pattern}")
        A(f"v_lshrrev_b32 v{vT+5}, v{vT+5}, s40")
        A(f"v_xor_b32 v{vT+2}, v{vT+2}, v{vT+5}")
        A(f"v_and_b32 v{vT+2}, 7, v{vT+2}")
        A(f"v_lshl_add_u32 v{vT+2}, v{vT+2}, 3, v{vT+4}")
        A(f"v_lshlrev_b32 v{vT+2}, 2, v{vT+2}")
        A(f"v_add_u32 v{vT+2}, {NODE}, v{vT+2}")
        A(f"ds_write_b32 v{vT+2}, v{vT+3}")
        A("s_mov_b64 exec, -1")
        for m in o.sched[1]: rec_dma(m, tag)
        A("s_waitcnt lgkmcnt(0)")
        A("s_barrier")
    A(f"s_lshl_b32 s{sT}, s{sWave}, 5")
    A(f"s_add_u32 s{sT}, s{sT}, {NODE}")
    A(f"v_mov_b32 v{vT+1}, s{sT}")
    A(f"ds_read_b128 v[{vT+4}:{vT+7}], v{vT+1}")
    A(f"ds_read_b32 v{vT+8}, v{vT+1} offset:16")
    A("s_waitcnt lgkmcnt(0)")
    A(f"s_movk_i32 s{sT}, 160")
    for k in range(5):
        A(f"v_mad_u32_u24 v{vT+4+k}, v{vT+4+k}, s{sT}, v{vT}")
        A(f"ds_read_b32 v{vT+10+k}, v{vT+4+k}")
    A(f"s_mul_i32 s{sT}, s{sWave}, {LSTRIDE//8}")
    A(f"s_add_u32 s{sT}, s{sT}, {LIST//8}")
    A("s_waitcnt lgkmcnt(0)")
    A(f"v_add3_u32 v{vT}, v{vT+10}, v{vT+11}, v{vT+12}")
    A(f"v_add3_u32 v{vT}, v{vT}, v{vT+13}, v{vT+14}")
    A(f"v_mov_b32 v{vT+1}, v{vT}")
    dpp_scan(vT + 1)
    A("s_nop 0")
    A(f"v_readlane_b32 s{sCnt}, v{vT+1}, 39")
    A(f"v_sub_u32 v{vT+1}, v{vT+1}, v{vT}")
    A(f"v_add_u32 v{vT+1}, s{sT}, v{vT+1}")
    A(f"s_mov_b32 s{sT}, 0x1000000")
    A("s_mov_b32 exec_hi, 0xff")
    for k in range(5):
        A(f"ds_write_b32 v{vT+4+k}, v{vT+1}")
        if k < 4: A(f"v_add3_u32 v{vT+1}, v{vT+1}, v{vT+10+k}, s{sT}")
    A("s_mov_b32 exec_hi, -1")
    if first:
        A(f"s_cmp_le_u32 s{sCnt}, {CAPL}")
        A(f"s_cbranch_scc1 L_nof_{tag}")
        A(f"ds_write_b32 v{vFlag}, v{vOne}")
        A(f"L_nof_{tag}:")
        for m in o.sched[2]: rec_dma(m, tag)
    A("s_waitcnt lgkmcnt(0)")
    A("s_barrier")
    if first: stamp(9)
    if first:
        A(f"ds_read_b32 v{vT+28}, v{vFlag}")
    def p3a(ids):
        for i in ids:
            A(f"ds_read_b32 v{vKey+i}, v{vKey+i}")
        for i in ids:
            A(f"v_lshrrev_b32 v{vT+2*i}, 18, v{pc(i)+2}")
            A(f"v_lshlrev_b32 v{vT+2*i}, 10, v{vT+2*i}")
            A(f"v_mov_b32 v{vT+2*i+1}, v{vB+i}")
    per_group(first, p3a, f"p3a_{tag}")
    A("s_waitcnt lgkmcnt(0)")
    if first:
        A(f"v_readfirstlane_b32 s{sT}, v{vT+28}")
        A(f"s_cmp_lg_u32 s{sT}, 0")
        A("s_cbranch_scc1 L_goslow")
    def p3b(ids):
        for i in ids:
            A(f"v_lshrrev_b32 v{vT+29}, 21, v{vKey+i}")
            A(f"v_or_b32 v{vT+2*i}, v{vT+2*i}, v{vT+29}")
            A(f"v_and_b32 v{vKey+i}, 0xffffff, v{vKey+i}")
            A(f"v_add_lshl_u32 v{vKey+i}, v{vRank+i}, v{vKey+i}, 3")
        for i in ids:
            A(f"s_mov_b64 exec, s[{mk(i)}:{mk(i)+1}]")
            A(f"ds_write_b64 v{vKey+i}, v[{vT+2*i}:{vT+2*i+1}]")
        A("s_mov_b64 exec, -1")
    per_group(first, p3b, f"p3b_{tag}")
    if first:
        for m in o.sched[3]: rec_dma(m, tag)
    A("s_waitcnt lgkmcnt(0)")
    A("s_barrier")

def idx_reads(p, off):
    A(f"ds_read_b32 v{ENT[p]}, v{vEntA} offset:{off}")
    A(f"ds_read_b32 v{vRA}, v{vRiA} offset:{off}")
    A(f"ds_read_b32 v{vRB}, v{vRiB} offset:{off}")

def rec_reads():
    A(f"v_lshl_add_u32 v{vRA}, v{vRA}, 5, v{vKh}")
    A(f"v_lshl_add_u32 v{vRB}, v{vRB}, 3, s101")
    A(f"ds_read_b64 v[{SHV}:{SHV+1}], v{vRB}")
    A(f"s_mov_b64 exec, s[{sM1}:{sM1+1}]")
    A(f"ds_read_b128 v[{A1}:{A1+3}], v{vRA}")
    A(f"s_mov_b64 exec, s[{sM2}:{sM2+1}]")
    A(f"ds_read_b128 v[{A2}:{A2+3}], v{vRA}")
    A("s_mov_b64 exec, -1")

def rw_mfma(q):
    H, hf = q >> 1, q & 1
    d = RW + 16 * H
    a = A1 if hf == 0 else A2
    b = WR + (H * 2 + hf) * 4
    c = "0" if hf == 0 else f"v[{d}:{d+15}]"
    A(f"v_mfma_f32_32x32x16_bf16 v[{d}:{d+15}], v[{a}:{a+3}], v[{b}:{b+3}], {c}")

def am_dot(u, half):
    if half == 0:
        A(f"v_dot2_f32_bf16 v{AMF+u}, v{SHV}, v{CG+2*u}, 0")
    else:
        A(f"v_dot2_f32_bf16 v{AMF+u}, v{SHV+1}, v{CG+2*u+1}, v{AMF+u}")

def am_cvt():
    A(f"v_cvt_pk_bf16_f32 v{AM}, v{AMF}, v{AMF+1}")
    A(f"v_cvt_pk_bf16_f32 v{AM+1}, v{AMF+2}, v{AMF+3}")

def tr_reads(e):
    xb = XB[e % 2]
    A(f"ds_read_b64_tr_b16 v[{xb}:{xb+1}], v{vTR} offset:{(e % D)*1024}")
    A(f"ds_read_b64_tr_b16 v[{xb+2}:{xb+3}], v{vTR} offset:{(e % D)*1024+512}")

def tp_mfma(e):
    xb, tp = XB[e % 2], TP[e % 2]
    A(f"v_mfma_f32_4x4x4_16b_bf16 v[{tp}:{tp+3}], v[{AM}:{AM+1}], v[{xb}:{xb+1}], 0 cbsz:4 abid:{e % 16}")
    A(f"v_mfma_f32_4x4x4_16b_bf16 v[{tp+4}:{tp+7}], v[{AM}:{AM+1}], v[{xb+2}:{xb+3}], 0 cbsz:4 abid:{e % 16}")

def dma_x(e):
    A(f"s_mov_b32 m0, s{sSlot + e % D}")
    A(f"s_and_b32 s{sT}, s{sE + e % 16}, 0xfffffc00")
    A(f"buffer_load_dwordx4 v{vDMA}, s[{sX}:{sX+3}], s{sT} offen lds")

def fmas(e):
    tp = TP[e % 2]
    odd = e % 2
    if o.pk == 2 and odd:
        A(f"v_mov_b32 v12, v{RW + e % 16}")
        A(f"v_mov_b32 v14, v{RW + 16 + e % 16}")
    A(f"s_set_gpr_idx_on s{sE + e % 16}, gpr_idx(SRC2,DST)")
    for H in range(2):
        rw = RW + 16 * H + e % 16
        if (o.pk and not odd) or o.pk == 2:
            if odd: rw = 12 + 2 * H
            for w in (0, 2):
                a = ACC + 4 * H + w
                A(f"v_pk_fma_f32 v[{a}:{a+1}], v[{tp+4*H+w}:{tp+4*H+w+1}], v[{rw}:{rw+1}], v[{a}:{a+1}] op_sel_hi:[1,0,1]")
        else:
            for w in range(4):
                A(f"v_fmac_f32 v{ACC + 4*H + w}, v{tp + 4*H + w}, v{rw}")
    A("s_set_gpr_idx_off")

def wave_addrs():
    A(f"s_mul_i32 s{sT}, s{sWave}, {LSTRIDE}")
    A(f"s_add_u32 s{sT}, s{sT}, {LIST}")
    A(f"v_lshl_add_u32 v{vEntA}, v1, 3, s{sT}")
    A(f"s_add_u32 s{sT}, s{sT}, 4")
    A(f"v_lshrrev_b32 v{vRiB}, 2, v1")
    A(f"v_lshl_add_u32 v{vRiB}, v{vRiB}, 3, s{sT}")
    A(f"v_bfe_u32 v12, v1, 3, 2")
    A(f"v_and_b32 v13, 3, v1")
    A(f"v_lshl_add_u32 v12, v12, 2, v13")
    A(f"v_lshl_add_u32 v{vRiA}, v12, 3, s{sT}")

vWa = 246
sWo = 63
def wo_block():
    t = 224 + 4
    for i in range(4):
        A(f"ds_read2_b64 v[{WT+4*i}:{WT+4*i+3}], v{vWa} offset0:{i*64} offset1:{i*64+32}")
    A(f"v_add_u32 v{vWa}, 8192, v{vWa}")
    A("s_waitcnt lgkmcnt(0)")
    A(f"s_set_gpr_idx_on s{sWo}, gpr_idx(DST)")
    for a in range(4):
        for j in range(4):
            r = WT + 4 * j + (a >> 1)
            A(f"v_perm_b32 v{WO + a*16 + j}, v{r+2}, v{r}, s{44 + (a & 1)}")
    A("s_set_gpr_idx_off")
    A(f"s_add_u32 s{sWo}, s{sWo}, 4")

WT = 228
def epi_addrs():
    A(f"s_and_b32 s{sT+1}, s{sWave}, 1")
    A(f"s_lshl_b32 s{sT}, s{sT+1}, 3")
    A(f"s_bfe_u32 s{sT+1}, s{sWave}, 0x10001")
    A(f"s_lshl_b32 s{sT+1}, s{sT+1}, 6")
    A(f"s_add_u32 s{sT}, s{sT}, s{sT+1}")
    A(f"s_add_u32 s{sT}, s{sT}, s{sRing}")
    A(f"v_mul_u32_u24 v{eT}, 48, v1")
    A(f"v_add_u32 v{eT}, s{sT}, v{eT}")
    A(f"v_lshrrev_b32 v12, 4, v1")
    A(f"v_bfe_u32 v13, v1, 2, 2")
    A(f"v_and_b32 v14, 3, v1")
    A(f"v_lshl_add_u32 v{eR}, v12, 3, v13")
    A(f"v_mul_u32_u24 v{eR}, 48, v{eR}")
    A(f"v_lshl_add_u32 v{eR}, v14, 13, v{eR}")
    A(f"v_and_b32 v15, 1, v14")
    A(f"v_lshl_add_u32 v{eR}, v15, 3, v{eR}")
    A(f"v_lshrrev_b32 v15, 1, v14")
    A(f"v_lshl_add_u32 v{eR}, v15, 6, v{eR}")
    A(f"s_lshr_b32 s{sT}, s{sWave}, 2")
    A(f"s_bfe_u32 s42, s{sWave}, 0x10001")
    A(f"s_xor_b32 s42, s42, s{sT}")
    A(f"s_lshl_b32 s43, s{sT}, 2")
    A(f"s_add_u32 s43, s43, {FLAG+8}")
    A(f"v_mov_b32 v{eC}, s43")
    A(f"s_lshl_b32 s40, s{sT}, 15")
    A(f"s_lshl_b32 s41, s42, 3")
    A(f"s_add_u32 s40, s40, s41")
    A(f"v_add_u32 v{eR}, s40, v{eR}")
    A(f"s_lshl_b32 s40, s{sT}, 7")
    A(f"s_lshl_b32 s41, s42, 2")
    A(f"s_add_u32 s40, s40, s41")
    A(f"s_add_u32 s40, s40, {NODE}")
    A(f"v_lshl_add_u32 v{eN}, v12, 5, s40")
    A(f"v_and_b32 v13, 15, v1")
    A(f"s_and_b32 s41, s{sWave}, 1")
    A(f"s_lshl_b32 s41, s41, 7")
    A(f"v_lshl_add_u32 v{eN+1}, v13, 3, s41")
    A(f"v_lshl_add_u32 v{vWa}, v12, 11, v{eN+1}")
    A(f"v_add_u32 v{vWa}, {WOL}, v{vWa}")
    A(f"s_mov_b32 s{sWo}, 0")
    A(f"s_mov_b32 s62, s42")

def small_frags():
    t = WO
    A(f"v_lshrrev_b32 v13, 5, v1")
    A(f"v_bfe_u32 v14, v1, 4, 1")
    A(f"v_lshlrev_b32 v13, 14, v13")
    A(f"v_lshl_add_u32 v13, v14, 5, v13")
    A(f"v_bfe_u32 v12, v1, 2, 2")
    A(f"v_lshl_add_u32 v13, v12, 8, v13")
    A(f"v_and_b32 v12, 3, v1")
    A(f"v_lshl_add_u32 v13, v12, 3, v13")
    A(f"v_lshlrev_b32 v14, 1, v12")
    for i in range(16):
        if i == 12: A("s_waitcnt lgkmcnt(4)")
        A(f"ds_read_u16 v{t+i}, v14 offset:{7168 + i*8}")
    A("s_waitcnt lgkmcnt(4)")
    for H in range(2):
        for hf in range(2):
            for tt in range(2):
                r = WR + (H * 2 + hf) * 4 + 2 * tt
                A(f"ds_read_b64_tr_b16 v[{r}:{r+1}], v13 offset:{32768 + 7168 + tt*8192 + H*128 + hf*64}")
    A("s_waitcnt lgkmcnt(8)")
    for q in range(8):
        A(f"v_lshl_or_b32 v{CG+q}, v{t+2*q+1}, 16, v{t+2*q}")
    A("s_waitcnt lgkmcnt(0)")

def wout_dma(sEA=sEA):
    srd(sEA, 46, 47, 32768)
    A(f"s_lshl_b32 s{sT}, s{sWave}, 12")
    A(f"s_add_u32 m0, s{sT}, {WOL}")
    A("s_nop 0")
    for q in range(4):
        A(f"buffer_load_dwordx4 v{vL16}, s[{sEA}:{sEA+3}], s{sT} offen offset:{q*1024} lds")

def small_dma():
    A(f"s_add_u32 m0, s{sRing}, 7168")
    A(f"s_cmp_ge_u32 s{sWave}, 4")
    A(f"s_cbranch_scc1 L_wr")
    A(f"s_cmp_lg_u32 s{sWave}, 0")
    A(f"s_cbranch_scc1 L_cg")
    srd(sTMP, 42, 43, 128)
    A("v_lshlrev_b32 v12, 2, v1")
    A(f"buffer_load_dword v12, s[{sTMP}:{sTMP+3}], 0 offen lds")
    A(f"s_branch L_cg")
    A(f"L_wr:")
    srd(sTMP, 44, 45, 4096)
    A(f"s_and_b32 s{sT}, s{sWave}, 3")
    A(f"s_lshl_b32 s{sT}, s{sT}, 10")
    A(f"buffer_load_dwordx4 v{vL16}, s[{sTMP}:{sTMP+3}], s{sT} offen lds")
    A(f"L_cg:")

def rec_consts():
    A(f"s_mul_i32 s{sEaW}, s{sWave}, {CAPW*32}")
    A(f"s_add_u32 s{sEaW}, s{sEaW}, {EAL}")
    A(f"s_mul_i32 s{sShW}, s{sWave}, {CAPW*8}")
    A(f"s_add_u32 s{sShW}, s{sShW}, {SHL}")
    A(f"v_and_b32 v{vP3}, 1, v1")
    A(f"v_lshlrev_b32 v{vP3}, 4, v{vP3}")
    A(f"v_lshrrev_b32 v{vFl}, 1, v1")
    A(f"v_lshl_add_u32 v{vFl}, v{vFl}, 2, s{sRing}")

def nonce_wait(tag):
    A(f"s_movk_i32 s{sRem}, {SPIN}")
    A("v_mov_b32 v12, 0")
    A(f"L_non{tag}:")
    A("s_waitcnt vmcnt(0)")
    A(f"v_readfirstlane_b32 s{sNon}, v{vN}")
    A(f"s_cmp_lg_u32 s{sNon}, 0")
    A(f"s_cbranch_scc1 L_non_ok{tag}")
    A(f"s_sub_u32 s{sRem}, s{sRem}, 1")
    A(f"s_cbranch_scc1 L_non_ok{tag}")
    A(f"buffer_load_dword v{vN}, v12, s[{sWS}:{sWS+3}], 0 offen {SC}")
    A(f"s_branch L_non{tag}")
    A(f"L_non_ok{tag}:")
    A(f"ds_write_b32 v{vFlag}, v{vN} offset:4")

def setup():
    A("v_lshrrev_b32 v12, 2, v1")
    A(f"s_lshl_b32 s{sT}, s{sWave}, 5")
    A(f"v_add_u32 v12, s{sT}, v12")
    A("v_and_b32 v13, 3, v1")
    A("v_lshlrev_b32 v13, 4, v13")
    A(f"s_movk_i32 s{sT}, {GST}")
    A(f"v_mad_u32_u24 v{vEo[0]}, v12, s{sT}, v13")
    A(f"v_mul_u32_u24 v{vG[0]}, {CH}, v12")
    A(f"v_cmp_gt_u32 vcc, {G1-16}, v12")
    A("v_bfrev_b32 v15, 2")
    A(f"v_add_u32 v{vEo[1]}, {16*GST}, v{vEo[0]}")
    A(f"v_add_u32 v{vG[1]}, {16*CH}, v{vG[0]}")
    A(f"v_cndmask_b32 v{vEo[1]}, v15, v{vEo[1]}, vcc")
    A("s_mov_b64 s[94:95], vcc")
    A(f"s_and_b32 s{sEntO}, s2, 7")
    A(f"s_lshl_b32 s{sEntO}, s{sEntO}, 5")
    A(f"s_lshr_b32 s{sT+1}, s2, 3")
    A(f"s_or_b32 s{sEntO}, s{sEntO}, s{sT+1}")
    A(f"s_lshl_b32 s{sEntO}, s{sEntO}, 6")
    A(f"s_add_u32 s98, s{sEntO}, {PLN}")
    if o.epoll == 1: ent_load(0, True); ent_load(1, True)
    sort_init(True)
    if o.epoll == 2: ent_load(0, True); ent_load(1, True)
    A(f"s_mul_i32 s{sRecW}, s{sWave}, {CAPW}")
    A(f"s_mov_b32 s100, {HIST}")
    if o.rot:
        A(f"s_and_b32 s99, s2, {o.rot[0]}")
        A(f"s_mul_i32 s99, s99, {o.rot[1]}")
    rec_consts()

def setup2():
    srd(sOUT, 48, 49, N * 1024)
    srd(sX, 32, 33, N * 1024)
    for q in range(D):
        A(f"s_add_u32 s{sSlot+q}, s{sRing}, {q*1024}")
    A(f"s_mov_b32 s101, {SHL}")
    A(f"s_mov_b32 s{sM1}, 0x0f0f0f0f\ns_mov_b32 s{sM1+1}, 0x0f0f0f0f")
    A(f"s_mov_b32 s{sM2}, 0xf0f0f0f0\ns_mov_b32 s{sM2+1}, 0xf0f0f0f0")
    A(f"s_mov_b32 s{sMode}, 0")
    A(f"s_mov_b32 s{sRound}, 0")
    if o.swz == 0:
        A(f"v_bfe_u32 v{8}, v1, 2, 2")
        A(f"v_lshrrev_b32 v12, 4, v1")
        A(f"v_and_b32 v13, 3, v1")
        A(f"v_lshlrev_b32 v{vDMA}, 8, v{8}")
        A(f"v_lshl_add_u32 v{vDMA}, v12, 6, v{vDMA}")
        A(f"v_lshl_add_u32 v{vDMA}, v13, 4, v{vDMA}")
        A(f"v_lshrrev_b32 v14, 5, v1")
        A(f"v_lshl_add_u32 v{vTR}, v14, 8, s{sRing}")
        A(f"v_lshl_add_u32 v{vTR}, v{8}, 6, v{vTR}")
        A(f"v_and_b32 v15, 1, v12")
        A(f"v_lshl_add_u32 v{vTR}, v15, 5, v{vTR}")
        A(f"v_lshl_add_u32 v{vTR}, v13, 3, v{vTR}")

    else:
        A("v_bfe_u32 v8, v1, 3, 2")
        A("v_lshrrev_b32 v14, 5, v1")
        A("v_and_b32 v12, 7, v1")
        A("v_bfe_u32 v13, v1, 4, 1")
        A("v_lshlrev_b32 v13, 2, v13")
        A("v_xor_b32 v12, v12, v13")
        A(f"v_lshlrev_b32 v{vDMA}, 8, v8")
        A(f"v_lshl_add_u32 v{vDMA}, v14, 7, v{vDMA}")
        A(f"v_lshl_add_u32 v{vDMA}, v12, 4, v{vDMA}")
        A("v_bfe_u32 v8, v1, 2, 2")
        A("v_lshrrev_b32 v12, 4, v1")
        A("v_and_b32 v13, 2, v8")
        A("v_xor_b32 v12, v12, v13")
        A(f"v_lshl_add_u32 v{vTR}, v8, 7, s{sRing}")
        A(f"v_lshl_add_u32 v{vTR}, v12, 5, v{vTR}")
        A("v_and_b32 v13, 3, v1")
        A(f"v_lshl_add_u32 v{vTR}, v13, 3, v{vTR}")
    A(f"v_lshlrev_b32 v{vKh}, 4, v14")
    A(f"v_add_u32 v{vKh}, {EAL}, v{vKh}")
    wave_addrs()
    for r in range(0, 48, 2): A(f"v_mov_b64 v[{ACC+r}:{ACC+r+1}], 0")
    for r in range(0, 8, 2): A(f"v_mov_b64 v[{A1+r}:{A1+r+1}], 0")

def producer():
    Q, d, sr, bb, rk = 128, 140, 144, 148, 152
    oA, oB = 156, 157
    A(f"s_or_b32 s{sT}, s2, s{sWave}")
    A("s_cbranch_scc1 L_nopub")
    A("s_lshl_b32 s62, s62, 3")
    A("s_or_b32 s62, s62, 0x80000000")
    A("v_mov_b32 v12, s62")
    A("v_mov_b32 v13, 0")
    A("s_mov_b64 exec, 1")
    A(f"buffer_store_dword v12, v13, s[{sWS}:{sWS+3}], 0 offen {SC}")
    A("s_mov_b64 exec, -1")
    A("L_nopub:")
    srd(sTMP, 36, 37, E * 4)
    A(f"buffer_load_dword v{d}, v{oA}, s[{sTMP}:{sTMP+3}], s72 offen")
    A("s_mov_b64 exec, 0xffff")
    A(f"buffer_load_dword v{d+1}, v{oB}, s[{sTMP}:{sTMP+3}], s72 offen")
    srd(sOUT, 34, 35, E * 4)
    srd(sSH, 38, 39, E * 8)
    A(f"buffer_load_dword v{sr+1}, v{oB}, s[{sOUT}:{sOUT+3}], s72 offen")
    A(f"v_lshlrev_b32 v13, 1, v{oB}")
    A("s_lshl_b32 s73, s72, 1")
    A(f"buffer_load_dwordx2 v[{Q+4}:{Q+5}], v13, s[{sSH}:{sSH+3}], s73 offen")
    A("s_mov_b64 exec, -1")
    A(f"buffer_load_dword v{sr}, v{oA}, s[{sOUT}:{sOUT+3}], s72 offen")
    A(f"v_lshlrev_b32 v13, 1, v{oA}")
    A(f"buffer_load_dwordx2 v[{Q}:{Q+1}], v13, s[{sSH}:{sSH+3}], s73 offen")
    A(f"s_cmp_lg_u32 s{sWave}, 0")
    A("s_cbranch_scc1 L_py")
    A("v_mov_b32 v12, 0")
    A(f"buffer_load_dword v{vN}, v12, s[{sWS}:{sWS+3}], 0 offen {SC}")
    A("L_py:")
    nw = 0
    if o.wpos == -1:
        wout_dma(); nw = 4
    if o.npx:
        if o.pref == 'x': srd(sX, 32, 33, N * 1024)
        else: srd(sX, 40, 41, E * 32)
        A(f"s_lshr_b32 s{sT}, s2, 3")
        A(f"s_sub_u32 s{sT+1}, s{sWave}, {8-o.npx}")
        A(f"s_mul_i32 s{sT+1}, s{sT+1}, 31")
        A(f"s_add_u32 s{sT}, s{sT}, s{sT+1}")
        A(f"s_lshl_b32 s{sT}, s{sT}, 13")
        A(f"s_cmp_lt_u32 s{sWave}, {8-o.npx}")
        A(f"s_cselect_b32 s{sT}, {N*1024 if o.pref == 'x' else E*32}, s{sT}")
        A("v_lshlrev_b32 v12, 7, v1")
        A(f"buffer_load_dword v228, v12, s[{sX}:{sX+3}], s{sT} offen")
        nw += 1
    A(f"v_lshl_or_b32 v{Q+2}, v0, 1, 1")
    A(f"v_lshrrev_b32 v{Q+6}, 1, v{oB}")
    A(f"v_or_b32 v{Q+6}, 1, v{Q+6}")
    A("s_movk_i32 s74, 40")
    A(f"s_mov_b32 s75, {CNT}")
    A(f"v_lshlrev_b32 v14, 4, v0")
    A("v_and_b32 v8, 3, v0")
    A("v_and_b32 v15, 0x1fc, v0")
    A("v_add_u32 v15, s75, v15")
    stamp(1)
    A("s_barrier")
    if o.wpos == -2:
        wout_dma(); nw += 4
    A(f"s_waitcnt vmcnt({4+nw})")
    stamp(24)
    for i in range(2):
        if i == 1: A("s_mov_b64 exec, 0xffff")
        A(f"v_mul_u32_u24 v12, 52429, v{d+i}")
        A(f"v_lshrrev_b32 v12, 21, v12")
        A("v_and_b32 v13, 7, v12")
        A(f"v_lshrrev_b32 v{bb+i}, 3, v12")
        A(f"v_lshl_or_b32 v{bb+i}, v13, 5, v{bb+i}")
        A(f"v_lshl_add_u32 v13, v{bb+i}, 2, s75")
        A(f"ds_add_rtn_u32 v{rk+i}, v13, v{vOne}")
        A(f"v_mul_u32_u24 v12, s74, v12")
        A(f"v_sub_u32 v12, v{d+i}, v12")
        A(f"v_lshl_or_b32 v{Q+4*i+2}, v12, 12, v{Q+4*i+2}")
        A(f"v_lshlrev_b32 v{bb+i}, 6, v{bb+i}")
    A("s_mov_b64 exec, -1")
    if o.wpos == -3:
        wout_dma(); nw += 4
    A(f"s_waitcnt vmcnt({nw})")
    A(f"s_cmp_lg_u32 s{sWave}, 0")
    A("s_cbranch_scc1 L_nre")
    A(f"v_readfirstlane_b32 s{sNon}, v{vN}")
    A("v_mov_b32 v12, 0")
    A(f"s_cmp_lg_u32 s{sNon}, 0")
    A("s_cbranch_scc1 L_nre")
    A(f"buffer_load_dword v{vN}, v12, s[{sWS}:{sWS+3}], 0 offen {SC}")
    A("L_nre:")
    if o.stamps: A(f"v_writelane_b32 v{vST}, s{sNon}, 27")
    stamp(25)
    for i in range(2):
        A(f"v_lshl_or_b32 v{Q+4*i+2}, v{sr+i}, 18, v{Q+4*i+2}")
    A("s_waitcnt lgkmcnt(0)")
    for i in range(2):
        A(f"v_lshrrev_b32 v12, 2, v{rk+i}")
        A(f"v_and_b32 v13, 3, v{rk+i}")
        A(f"v_lshl_add_u32 v{bb+i}, v12, 14, v{bb+i}")
        A(f"v_cmp_gt_u32 vcc, 16, v{rk+i}")
        A(f"v_lshl_add_u32 v{bb+i}, v13, 4, v{bb+i}")
        A("s_mov_b64 exec, vcc" if i == 0 else "s_and_b64 exec, vcc, 0xffff")
        A(f"ds_write_b96 v{bb+i}, v[{Q+4*i}:{Q+4*i+2}]")
        A("s_mov_b64 exec, -1")
    A(f"s_cmp_lg_u32 s{sWave}, 0")
    A("s_cbranch_scc1 L_non_done")
    A(f"s_cmp_lg_u32 s{sNon}, 0")
    A("s_cbranch_scc1 L_non_okp")
    nonce_wait("p")
    A("L_non_done:")
    if o.wpos == -4: wout_dma()
    stamp(26)
    srd(sWS, 60, 61, WS_BYTES)
    A(f"s_mul_i32 s72, s2, {GST}")
    A("s_add_u32 s73, s72, 8192")
    A("s_waitcnt lgkmcnt(0)")
    A("s_barrier")
    stamp(2)
    C, T0 = 64, 68
    A(f"ds_read_b32 v13, v{vFlag} offset:4")
    for q in range(2):
        A(f"ds_read_b32 v{C+q}, v15 offset:{q*512}")
        A(f"ds_read_b96 v[{T0+4*q}:{T0+4*q+2}], v14 offset:{q*8192}")
    for q in range(2):
        A(f"ds_read_b96 v[{T0+8+4*q}:{T0+8+4*q+2}], v14 offset:{16384 + q*8192}")
    A("s_waitcnt lgkmcnt(6)")
    A(f"v_readfirstlane_b32 s{sNon}, v13")
    A(f"s_cmp_eq_u32 s{sNon}, 0")
    A("s_cbranch_scc1 L_nostore")
    for q in range(2):
        A(f"s_waitcnt lgkmcnt({4 - 2*q})")
        A(f"v_cmp_lt_u32 vcc, v8, v{C+q}")
        A(f"v_max_u32 v13, 1, v{C+q}")
        A(f"v_add_u32 v13, -1, v13")
        A(f"v_cndmask_b32 v{T0+4*q+2}, 0, v{T0+4*q+2}, vcc")
        A(f"v_lshrrev_b32 v13, 2, v13")
        A(f"v_min_u32 v13, 4, v13")
        A(f"v_or_b32 v{T0+4*q+3}, s{sNon}, v13")
        A(f"buffer_store_dwordx4 v[{T0+4*q}:{T0+4*q+3}], v14, s[{sWS}:{sWS+3}], s{72+q} offen {o.pfl}")
    def plane(k, R):
        A("v_add_u32 v8, 4, v8")
        A(f"s_add_u32 s72, s72, {PLN}")
        A(f"s_add_u32 s73, s73, {PLN}")
        A("s_waitcnt lgkmcnt(0)")
        for q in range(2):
            A(f"v_cmp_lt_u32 vcc, {4*k}, v{C+q}")
            A(f"v_cmp_lt_u32 s[64:65], v8, v{C+q}")
            A(f"v_mov_b32 v{R+4*q+3}, s{sNon}")
            A("s_mov_b64 exec, vcc")
            A(f"s_cbranch_execz L_n{k}{q}")
            A(f"v_cndmask_b32 v{R+4*q+2}, 0, v{R+4*q+2}, s[64:65]")
            A(f"buffer_store_dwordx4 v[{R+4*q}:{R+4*q+3}], v14, s[{sWS}:{sWS+3}], s{72+q} offen {o.pfl}")
            A(f"L_n{k}{q}:")
            A("s_mov_b64 exec, -1")
    plane(1, T0 + 8)
    A(f"v_max_u32 v13, v{C}, v{C+1}")
    A("v_cmp_lt_u32 vcc, 8, v13")
    A("s_cmp_eq_u64 vcc, 0")
    A("s_cbranch_scc1 L_nostore")
    for q in range(4):
        A(f"ds_read_b96 v[{164+4*q}:{164+4*q+2}], v14 offset:{32768 + q*8192}")
    plane(2, 164)
    plane(3, 172)
    A("L_nostore:")
    A("s_waitcnt lgkmcnt(0)")
    A("s_barrier")

def kernel():
    A(f".globl {KN}\n.p2align 8\n.type {KN},@function\n{KN}:")
    A(f"s_cmp_ge_u32 s2, {NB}")
    A("s_cbranch_scc1 L_main_end")
    stamp(0)
    A("s_load_dwordx16 s[32:47], s[0:1], 0")
    A("s_load_dwordx4 s[48:51], s[0:1], 64")
    A("s_load_dwordx2 s[60:61], s[0:1], 80")
    A("s_memrealtime s[62:63]")
    A("v_lshrrev_b32 v11, 6, v0")
    A("v_and_b32 v1, 63, v0")
    A(f"v_readfirstlane_b32 s{sWave}, v11")
    if o.cpf:
        A(f"s_cmp_lg_u32 s{sWave}, 2")
        A("s_cbranch_scc1 L_nocpf")
        A("s_getpc_b64 s[4:5]")
        A("L_pc:")
        A("v_lshlrev_b32 v12, 7, v1")
        A("v_mov_b32 v13, s5")
        A("v_add_co_u32 v12, vcc, s4, v12")
        A("s_nop 1")
        A("v_addc_co_u32 v13, vcc, 0, v13, vcc")
        A("global_load_dword v236, v[12:13], off")
        A("v_add_co_u32 v12, vcc, 0x2000, v12")
        A("s_nop 1")
        A("v_addc_co_u32 v13, vcc, 0, v13, vcc")
        A("v_cmp_gt_u32 vcc, (L_main_end-L_pc-0x2000)/128, v1")
        A("s_mov_b64 exec, vcc")
        A("global_load_dword v237, v[12:13], off")
        A("s_mov_b64 exec, -1")
        A("L_nocpf:")
    A(f"v_lshlrev_b32 v{vL16}, 4, v1")
    A(f"v_mov_b64 v[{vT}:{vT+1}], 0")
    A(f"v_mov_b32 v{vFlag}, {FLAG}")
    A(f"ds_write_b32 v{vFlag}, v{vT}")
    A(f"ds_write_b64 v{vFlag}, v[{vT}:{vT+1}] offset:8")
    A(f"v_lshlrev_b32 v12, 2, v0")
    A(f"v_add_u32 v12, {CNT}, v12")
    A(f"ds_write_b32 v12, v{vT}")
    A(f"s_lshl_b32 s{sRing}, s{sWave}, 13")
    A(f"s_mul_i32 s72, s2, {CH*4}")
    A(f"v_lshlrev_b32 v156, 2, v0")
    A(f"s_lshl_b32 s{sT}, s{sWave}, 6")
    A(f"s_add_u32 s{sT}, s{sT}, 2048")
    A(f"v_lshl_add_u32 v157, v1, 2, s{sT}")
    A(f"v_mov_b32 v{vOne}, 1")
    A("s_waitcnt lgkmcnt(0)")
    srd(sWS, 50, 51, 256)
    producer()
    stamp(3)
    if o.wpos == 0: wout_dma()
    small_dma()
    srd(sEA, 40, 41, E * 32)
    setup()
    stamp(4)
    if o.epoll == 0: ent_load(0, True); ent_load(1, True)
    if o.s2pos == 0: setup2()
    if o.epoll == 3: ent_load(0, True); ent_load(1, True)
    if o.npy:
        sd = sX if o.pref == 'x' else sEA
        A(f"s_lshr_b32 s{sT}, s2, 3")
        A(f"s_sub_u32 s{sT+1}, s{sWave}, {8-o.npy-o.npx}")
        A(f"s_mul_i32 s{sT+1}, s{sT+1}, 31")
        A(f"s_add_u32 s{sT}, s{sT}, s{sT+1}")
        A(f"s_lshl_b32 s{sT}, s{sT}, 13")
        A(f"s_cmp_lt_u32 s{sWave}, {8-o.npy}")
        A(f"s_cselect_b32 s{sT}, {N*1024 if o.pref == 'x' else E*32}, s{sT}")
        A("v_lshlrev_b32 v12, 7, v1")
        A(f"buffer_load_dword v229, v12, s[{sd}:{sd+3}], s{sT} offen")
    A("s_waitcnt lgkmcnt(0)")
    A("s_barrier")
    A(f"s_movk_i32 s{sRem}, {SPIN}")
    stamp(5)
    stamp(6)
    A(f"s_cmp_eq_u32 s{sNon}, 0")
    A("s_cbranch_scc1 L_ent_to")
    if o.npy:
        A("s_waitcnt vmcnt(1)")
        A("s_branch L_ent_chk1")
    A("L_ent_chk:")
    A("s_waitcnt vmcnt(0)")
    A("L_ent_chk1:")
    A(f"v_xor_b32 v{vT+30}, s{sNon}, v{pc(0)+3}")
    A(f"v_xor_b32 v{vT+31}, s{sNon}, v{pc(1)+3}")
    A(f"v_cmp_lt_u32 s[40:41], 7, v{vT+30}")
    A(f"v_cmp_lt_u32 s[42:43], 7, v{vT+31}")
    A("s_and_b64 s[42:43], s[42:43], s[94:95]")
    A("s_or_b64 vcc, s[40:41], s[42:43]")
    A("s_cbranch_scc0 L_ent_ok")
    A(f"s_sub_u32 s{sRem}, s{sRem}, 1")
    A("s_cbranch_scc1 L_ent_to")
    if o.sleep: A(f"s_sleep {o.sleep}")
    for h in range(2):
        A(f"s_wqm_b64 exec, s[{40+2*h}:{41+2*h}]")
        A(f"s_cbranch_execz L_er{h}")
        ent_load(h)
        A(f"L_er{h}:")
    A("s_mov_b64 exec, -1")
    A("s_branch L_ent_chk")
    A("L_ent_to:")
    A("s_waitcnt vmcnt(0)")
    A(f"ds_write_b32 v{vFlag}, v{vOne}")
    A(f"v_mov_b32 v{pc(0)+2}, 0")
    A(f"v_mov_b32 v{pc(1)+2}, 0")
    A(f"v_mov_b64 v[{vT+30}:{vT+31}], 0")
    A("L_ent_ok:")
    if o.stamps: A(f"v_writelane_b32 v{vST}, s{sRem}, 21")
    stamp(7)
    A(f"v_cndmask_b32 v{vT+31}, 0, v{vT+31}, s[94:95]")
    A(f"s_mov_b32 s{sNw}, 0")
    A(f"s_mov_b32 s{sG2}, 0")
    A(f"v_cmp_ne_u32 s[40:41], 0, v{vT+30}")
    A(f"v_cmp_ne_u32 s[42:43], 0, v{vT+31}")
    for h in range(2):
        A(f"s_mov_b64 exec, s[{40+2*h}:{41+2*h}]")
        A(f"s_cbranch_execz L_e1{h}")
        ent_load(2 + h, True)
        A(f"s_mov_b32 s{sG2}, 1")
        A(f"L_e1{h}:")
    A("s_mov_b64 exec, -1")
    p1a([0, 1])
    for m in range(o.nf):
        A(f"ds_read_b32 v{vT+16+m}, v{vFl} offset:{m*128}")
    p1b([0, 1], True)
    A("s_waitcnt lgkmcnt(4)")
    for m in range(o.nf): rec_dma(m, "f", False)
    if o.s2pos == 1: setup2()
    A(f"s_cmp_eq_u32 s{sG2}, 0")
    A("s_cbranch_scc1 L_noext")
    A(f"s_max_u32 s{sNw}, s{sNw}, {32*o.nf}")
    A(f"s_waitcnt vmcnt({o.nf})")
    ext_group(1)
    for g in (2, 3):
        A(f"v_cmp_lt_u32 s[40:41], {g-1}, v{vT+30}")
        A(f"v_cmp_lt_u32 s[42:43], {g-1}, v{vT+31}")
        A("s_or_b64 vcc, s[40:41], s[42:43]")
        A("s_cbranch_scc0 L_noext")
        A(f"s_mov_b32 s{sG2}, {g}")
        A(f"s_add_u32 s98, s98, {PLN}")
        A(f"v_mov_b32 v{pc(2*g)+3}, 0")
        A(f"v_mov_b32 v{pc(2*g+1)+3}, 0")
        ext_group(g)
    A(f"v_max_u32 v{vT}, v{vT+30}, v{vT+31}")
    A(f"v_cmp_eq_u32 vcc, 4, v{vT}")
    A("s_mov_b64 exec, vcc")
    A(f"ds_write_b32 v{vFlag}, v{vOne}")
    A("s_mov_b64 exec, -1")
    A("L_noext:")
    for m in range(o.nf, 5):
        A(f"ds_read_b32 v{vT+16+m}, v{vFl} offset:{m*128}")
    A(f"s_cmp_le_u32 s{sNw}, {CAPW}")
    A("s_cbranch_scc1 L_nwok")
    A(f"ds_write_b32 v{vFlag}, v{vOne}")
    A("L_nwok:")
    if o.sched[0]:
        A("s_waitcnt lgkmcnt(0)")
        for m in o.sched[0]: rec_dma(m, "f")
    sort_rest(True, "f")
    A("L_sweep:")
    if o.wpos == 5:
        A(f"s_cmp_lg_u32 s{sRound}, 0")
        A("s_cbranch_scc1 L_now5")
        wout_dma(sTMP)
        A("L_now5:")
    idx_reads(0, 0)
    A("s_waitcnt lgkmcnt(0)")
    for e in range(D + 1):
        A(f"v_readlane_b32 s{sE+e}, v{ENT[0]}, {e}")
    for e in range(D - 1):
        dma_x(e)
    stamp(17)
    A(f"s_cmp_lg_u32 s{sRound}, 0")
    A("s_cbranch_scc1 L_nosf")
    small_frags()
    epi_addrs()
    A("s_mov_b32 s44, 0x05040100")
    A("s_mov_b32 s45, 0x07060302")
    A("L_nosf:")
    stamp(18)
    A(f"s_waitcnt vmcnt({D-1})")
    stamp(19)
    A("s_barrier")
    stamp(23)
    A("s_setprio 2")
    if o.yprio:
        A(f"s_cmp_lt_u32 s{sWave}, 4")
        A("s_cbranch_scc1 L_yp")
        A("s_setprio 3")
        A("L_yp:")
    rec_reads()
    dma_x(D - 1)
    A(f"s_sub_u32 s{sRem}, s{sCnt}, 1")
    A("s_cbranch_scc1 L_sweep_done")
    A(f"s_waitcnt vmcnt({D-1})")
    tr_reads(0)
    A("s_waitcnt lgkmcnt(2)")
    for h in range(2):
        for u in range(4): am_dot(u, h)
    for q in range(4): rw_mfma(q)
    am_cvt()
    A(f"s_waitcnt vmcnt({D-2})")
    tr_reads(1)
    A("s_waitcnt lgkmcnt(2)")
    tp_mfma(0)
    dma_x(D)
    stamp(10)
    A("L_loop:")
    for j in range(16):
        A(f"; ---- step {j}")
        A(f"s_waitcnt vmcnt({o.vm})")
        tr_reads(j + 2)
        A(f"v_readlane_b32 s{sE + (j + D + 1) % 16}, v{ENT[0]}, {j + D + 1}")
        A(f"s_waitcnt lgkmcnt({5 if j in (1, 4) else 2})")
        if j == 15:
            am_cvt()
            A(f"v_mov_b32 v{ENT[0]}, v{ENT[1]}")
            A("s_nop 0")
        tp_mfma(j + 1)
        dma_x(j + D + 1)
        if j == 0:
            idx_reads(1, 128)
            A(f"v_add_u32 v{vEntA}, 128, v{vEntA}")
            A(f"v_add_u32 v{vRiA}, 128, v{vRiA}")
            A(f"v_add_u32 v{vRiB}, 128, v{vRiB}")
        if j == 3:
            rec_reads()
        if j == 6:
            A(f"s_cmp_ge_u32 s{sWo}, 16")
            A("s_cbranch_scc1 L_nowb")
            wo_block()
            A("L_nowb:")
        if j == 8:
            for u in range(4): am_dot(u, 0)
        if j == 9:
            for u in range(4): am_dot(u, 1)
        fmas(j)
        A(f"s_sub_u32 s{sRem}, s{sRem}, 1")
        A("s_cbranch_scc1 L_sweep_done")
        if j == 15:
            for q in range(4): rw_mfma(q)
            A("s_branch L_loop")
    A("L_sweep_done:")
    A(f"s_cmp_lg_u32 s{sMode}, 0")
    A("s_cbranch_scc1 L_slownext")
    A("L_epi:")
    A("s_setprio 0")
    stamp(11)
    for k in range(5):
        for H in range(2):
            a = ACC + 8 * k + 4 * H
            t = 64 + (k * 2 + H) * 2
            A(f"v_cvt_pk_bf16_f32 v{t}, v{a}, v{a+1}")
            A(f"v_cvt_pk_bf16_f32 v{t+1}, v{a+2}, v{a+3}")
    A("s_waitcnt vmcnt(0)")
    for k in range(5):
        for H in range(2):
            t = 64 + (k * 2 + H) * 2
            A(f"ds_write_b64 v{eT}, v[{t}:{t+1}] offset:{H*64*48 + k*8}")
    A("s_mov_b64 exec, 1")
    A(f"ds_add_u32 v{eC}, v{vOne}")
    A("s_mov_b64 exec, -1")
    A(f"s_mul_i32 s{sT}, s2, {NPB*1024}")
    for u in range(3):
        A(f"ds_read_b32 v{eO+u}, v{eN} offset:{u*8}")
    A(f"s_cmp_lt_u32 s{sWo}, 16")
    A("s_cbranch_scc1 L_wfin")
    A("L_gw:")
    A(f"ds_read_b32 v15, v{eC}")
    A("s_waitcnt lgkmcnt(0)")
    A("v_readfirstlane_b32 s43, v15")
    A("s_cmp_ge_u32 s43, 4")
    A("s_cbranch_scc1 L_gok")
    A("s_sleep 1")
    A("s_branch L_gw")
    A("L_gok:")
    stamp(12)
    def breads(u):
        for s in range(4):
            for tt in range(2):
                r = 16 + u * 16 + s * 4 + 2 * tt
                A(f"ds_read_b64_tr_b16 v[{r}:{r+1}], v{eR} offset:{u*16 + (32*s + 4*tt)*48}")
    def fins(uf):
        df = 64 + uf * 16
        oo = 112 + uf * 8
        return [[f"v_cvt_pk_bf16_f32 v{oo+2*r}, v{df+r}, v{df+4+r}",
                 f"v_cvt_pk_bf16_f32 v{oo+2*r+1}, v{df+8+r}, v{df+12+r}",
                 f"buffer_store_dwordx2 v[{oo+2*r}:{oo+2*r+1}], v{eO+uf}, s[{sOUT}:{sOUT+3}], s{sT} offen offset:{r*256} {o.stfl}"] for r in range(4)]
    def mmf(u, uf):
        d = 64 + u * 16
        fl = fins(uf) if uf is not None else []
        n = 0
        for s in range(4):
            for a in range(4):
                b = 16 + u * 16 + s * 4
                w = WO + (a * 4 + s) * 4
                c = "0" if s == 0 else f"v[{d+4*a}:{d+4*a+3}]"
                A(f"v_mfma_f32_16x16x32_bf16 v[{d+4*a}:{d+4*a+3}], v[{b}:{b+3}], v[{w}:{w+3}], {c}")
                n += 1
                if fl and n >= 8 and n % 2 == 0:
                    for x in fl.pop(0): A(x)
    def fin(u):
        for g in fins(u):
            for x in g: A(x)
    breads(0)
    breads(1)
    for u in range(3):
        A(f"v_lshl_add_u32 v{eO+u}, v{eO+u}, 10, v{eN+1}")
    A("s_waitcnt lgkmcnt(8)")
    breads(2)
    mmf(0, None)
    A("s_waitcnt lgkmcnt(8)")
    mmf(1, 0)
    A(f"s_cmp_lg_u32 s62, 0")
    A("s_cbranch_scc1 L_epi2")
    A("s_waitcnt lgkmcnt(0)")
    mmf(2, 1)
    A("s_nop 7")
    fin(2)
    A("s_branch L_epi3")
    A("L_epi2:")
    A("s_nop 7")
    fin(1)
    A("L_epi3:")
    if o.stamps:
        stamp(13)
        A("s_waitcnt vmcnt(0)")
        stamp(14)
        A(f"v_writelane_b32 v{vST}, s{sCnt}, 20")
        srd(sWS, 60, 61, 0x10000000)
        A(f"s_lshl_b32 s{sT}, s2, 3")
        A(f"s_add_u32 s{sT}, s{sT}, s{sWave}")
        A(f"s_lshl_b32 s{sT}, s{sT}, 8")
        A(f"s_add_u32 s{sT}, s{sT}, 0x8000000")
        A("v_lshlrev_b32 v7, 2, v1")
        A(f"buffer_store_dword v{vST}, v7, s[{sWS}:{sWS+3}], s{sT} offen")
    A("L_main_end:")
    A("s_endpgm")
    A("L_wfin:")
    wo_block()
    A(f"s_cmp_lt_u32 s{sWo}, 16")
    A("s_cbranch_scc1 L_wfin")
    A("s_branch L_gw")
    A("L_slownext:")
    A(f"s_add_u32 s{sRound}, s{sRound}, 1")
    A(f"s_cmp_ge_u32 s{sRound}, {E // CAPL}")
    A("s_cbranch_scc1 L_epi")
    A("s_branch L_slowload")
    A("L_goslow:")
    A(f"s_mov_b32 s{sMode}, 1")
    o.pcb = 228
    A("L_slowload:")
    A("s_waitcnt vmcnt(0) lgkmcnt(0)")
    A("s_barrier")
    wave_addrs()
    A(f"s_mul_i32 s{sT}, s{sRound}, {CAPL}")
    A(f"v_add_u32 v{vG[0]}, s{sT}, v0")
    A(f"v_lshlrev_b32 v{vT+23}, 2, v{vG[0]}")
    A(f"v_lshlrev_b32 v{vT+24}, 3, v{vG[0]}")
    srd(sTMP, 36, 37, E * 4)
    A(f"buffer_load_dword v{vT+21}, v{vT+23}, s[{sTMP}:{sTMP+3}], 0 offen")
    srd(sTMP, 34, 35, E * 4)
    A(f"buffer_load_dword v{vT+22}, v{vT+23}, s[{sTMP}:{sTMP+3}], 0 offen")
    A(f"buffer_load_dwordx2 v[{pc(0)}:{pc(0)+1}], v{vT+24}, s[{sSH}:{sSH+3}], 0 offen")
    sort_init(False)
    rec_consts()
    A(f"s_mul_i32 s{sT}, s2, {NPB}")
    A("s_waitcnt vmcnt(0)")
    A(f"v_subrev_u32 v{vT+21}, s{sT}, v{vT+21}")
    A(f"v_lshl_or_b32 v{vT+22}, v{vT+22}, 18, 1")
    A(f"v_lshl_or_b32 v{pc(0)+2}, v{vT+21}, 12, v{vT+22}")
    A(f"v_cmp_gt_u32 vcc, {NPB}, v{vT+21}")
    A(f"s_movk_i32 s{sT}, {CAPL}")
    A(f"v_cmp_gt_u32 s[40:41], s{sT}, v0")
    A("s_nop 1")
    A("s_and_b64 vcc, vcc, s[40:41]")
    A("s_nop 1")
    A(f"v_cndmask_b32 v{pc(0)+2}, 0, v{pc(0)+2}, vcc")
    A(f"s_mov_b32 s{sNw}, 0")
    A("s_waitcnt lgkmcnt(0)")
    A("s_barrier")
    p1a([0])
    for m in range(2):
        A(f"ds_read_b32 v{vT+16+m}, v{vFl} offset:{m*128}")
    p1b([0], False)
    A("s_waitcnt lgkmcnt(0)")
    rec_dma(0, "s"); rec_dma(1, "s")
    sort_rest(False, "s")
    A("s_branch L_sweep")

def build(path, stamps=False, vm=5, stfl='sc0 sc1', sleep=0, pat=(0, 2, 3, 1, 7), cpf=1, late=1, wpos=-4, nph=5, pref='x', nf=1, sched=([1], [], [], [2, 3, 4]), epoll=0, s2pos=0, npx=0, reset=1, ffl='sc1', pfl='sc1', rot=None, npy=0, spin=4000, swz=1, yprio=0, pk=0):
    o.pk = pk
    o.yprio = yprio
    o.swz = swz
    global SPIN
    SPIN = spin
    o.npy = npy
    o.rot = rot
    o.ffl, o.pfl = ffl, pfl
    o.reset = reset
    o.npx = npx
    o.s2pos = s2pos
    o.nf, o.sched, o.epoll = nf, sched, epoll
    global L
    o.pcb = PC
    o.nph, o.pref = nph, pref
    o.stamps, o.vm, o.stfl, o.sleep, o.cpf, o.late, o.wpos = stamps, vm, stfl, sleep, cpf, late, wpos
    o.pattern = sum(x << (4 * i) for i, x in enumerate(pat))
    L = []
    A(f"; @launch grid=({NB},1,1) block=(512,1,1) lds={LDS_MAIN}")
    A('.amdgcn_target "amdgcn-amd-amdhsa--gfx950"')
    A(".text")
    kernel()
    A('.section .rodata,"a"')
    A(".p2align 6")
    A(desc(KN, NVG, 102))
    open(path, "w").write("\n".join(L) + "\n")

if __name__ == "__main__":
    build("final.s")
    build("final_st.s", stamps=True)
    build("final_b.s", vm=4, npx=1, epoll=3)
```

```python
import sys

KN = "gather_scatter__tensor_product_equiv_mace__graph_kernel"
N, E = 10000, 160000
NB, NPB = 250, 40
G1, CH = 250, 640
GST = 16384 + 128
PLN = G1 * GST
WS_BYTES = 4 * PLN
CAPW = 144
CAPL = 128
D = 8
EAL = 65536
SHL = EAL + 8 * CAPW * 32
LSTRIDE = 160 * 8
LIST = SHL + 8 * CAPW * 8
HIST = LIST + 8 * LSTRIDE
DEG = HIST + 40 * 160
NODE = DEG + 256
FLAG = NODE + 256
WOL = FLAG + 16 + 48
LDS_MAIN = WOL + 32768
PADW = (N << 10) | 40
PADE = 0x00FFFFFF
CNT = 65536
SPIN = 4000
SC = "sc1"

L = []
def A(s): L.append(s)

class O: pass
o = O()
vST = 250
def stamp(n):
    if not o.stamps: return
    A("s_memrealtime s[4:5]")
    A("s_waitcnt lgkmcnt(0)")
    A(f"v_writelane_b32 v{vST}, s4, {n}")

def srd(d, lo, hi, nbytes):
    A(f"s_mov_b32 s{d}, s{lo}")
    A(f"s_mov_b32 s{d+1}, s{hi}")
    A(f"s_mov_b32 s{d+2}, {nbytes}")
    A(f"s_mov_b32 s{d+3}, 0x20000")

def desc(name, nvg, nsg):
    return (f".amdhsa_kernel {name}\n  .amdhsa_next_free_vgpr {nvg}\n  .amdhsa_next_free_sgpr {nsg}\n"
            f"  .amdhsa_accum_offset {(nvg+3)//4*4}\n  .amdhsa_group_segment_fixed_size 0\n  .amdhsa_kernarg_size 88\n"
            f"  .amdhsa_user_sgpr_count 2\n  .amdhsa_user_sgpr_kernarg_segment_ptr 1\n  .amdhsa_system_sgpr_workgroup_id_x 1\n"
            f"  .amdhsa_float_denorm_mode_32 3\n.end_amdhsa_kernel")

def dpp_scan(v):
    for sh in (1, 2, 4, 8):
        A("s_nop 1")
        A(f"v_add_u32_dpp v{v}, v{v}, v{v} row_shr:{sh} row_mask:0xf bank_mask:0xf bound_ctrl:0")
    A("s_nop 1")
    A(f"v_add_u32_dpp v{v}, v{v}, v{v} row_bcast:15 row_mask:0xa bank_mask:0xf")
    A("s_nop 1")
    A(f"v_add_u32_dpp v{v}, v{v}, v{v} row_bcast:31 row_mask:0xc bank_mask:0xf")

ACC = 16
RW = 64
WR = 96
A1, A2 = 112, 116
CG = 120
SHV = 128
AMF = 130
AM = 134
XB = [136, 140]
TP = [144, 152]
ENT = [160, 161]
vRA, vRB = 162, 163
WO = 164
NVG = 252
vDMA, vTR, vEntA, vRiA, vRiB, vKh = 2, 3, 4, 5, 6, 7
vFlag, vOne, v64 = 9, 10, 11
sX, sEA, sSH, sWS, sOUT, sTMP = 8, 12, 16, 20, 24, 28
sWave, sRing, sRem, sCnt, sRound, sMode, sNw, sG2, sRecW = 3, 52, 53, 54, 55, 56, 57, 58, 59
sEaW, sShW = 96, 97
sE = 64
sT = 80
sM1, sM2 = 82, 84
sSlot = 86
sNon, sEntO = 6, 7
PC = 180
def pc(i): return o.pcb + 4 * i
vKey, vRank, vB = 64, 72, 80
vG = [88, 89]
vEo = [90, 91]
vP3, vFl = 92, 94
vT = 128
vL16, vN = 212, 238
eT, eR, eC, eO, eN = 244, 245, 247, 12, 248
def mk(i): return 64 + 2 * i

def sort_init(first):
    A(f"v_mov_b64 v[{vT}:{vT+1}], 0")
    A(f"v_mov_b64 v[{vT+2}:{vT+3}], 0")
    A(f"v_min_u32 v{vT+6}, 399, v0")
    A(f"v_lshlrev_b32 v{vT+6}, 4, v{vT+6}")
    A(f"v_add_u32 v{vT+6}, {HIST}, v{vT+6}")
    A(f"ds_write_b128 v{vT+6}, v[{vT}:{vT+3}]")
    A(f"v_lshlrev_b32 v{vT+5}, 2, v1")
    if first:
        A(f"v_add_u32 v{vT+7}, {DEG}, v{vT+5}")
        A(f"ds_write_b32 v{vT+7}, v1")
    A(f"v_mov_b32 v{vT+4}, {PADE}")
    A(f"v_add_u32 v{vT+5}, s{sRing}, v{vT+5}")
    for q in range(3):
        A(f"ds_write_b32 v{vT+5}, v{vT+4} offset:{q*256}")
    A(f"v_mov_b32 v{vT+8}, {PADW}")
    A(f"v_mov_b32 v{vT+9}, 0")
    A(f"v_mov_b64 v[{vT+10}:{vT+11}], v[{vT+8}:{vT+9}]")
    A(f"v_lshlrev_b32 v{vT+7}, 4, v0")
    A(f"v_add_u32 v{vT+7}, {LIST}, v{vT+7}")
    A(f"ds_write_b128 v{vT+7}, v[{vT+8}:{vT+11}]")
    A(f"ds_write_b128 v{vT+7}, v[{vT+8}:{vT+11}] offset:2048")
    A(f"v_mov_b32 v{v64}, 64")

def rec_dma(m, tag, cond=True):
    if cond:
        A(f"s_cmp_le_u32 s{sNw}, {32*m}")
        A(f"s_cbranch_scc1 L_rd_{tag}{m}")
    if m == 4: A("s_mov_b32 exec_hi, 0")
    A(f"s_add_u32 m0, s{sEaW}, {m*1024}")
    A(f"v_lshl_add_u32 v{vT+26}, v{vT+16+m}, 5, v{vP3}")
    A(f"buffer_load_dwordx4 v{vT+26}, s[{sEA}:{sEA+3}], 0 offen lds")
    if m == 4: A("s_mov_b32 exec_hi, -1")
    if cond: A(f"L_rd_{tag}{m}:")

def ent_load(i, first=False):
    so = [sEntO, 98, 99, 99][i // 2]
    fl = o.ffl if first else SC
    A(f"buffer_load_dwordx4 v[{pc(i)}:{pc(i)+3}], v{vEo[i%2]}, s[{sWS}:{sWS+3}], s{so} offen {fl}")

def p1a(ids):
    for i in ids:
        A(f"v_and_b32 v{vT}, 1, v{pc(i)+2}")
        A(f"v_cmp_ne_u32 s[{mk(i)}:{mk(i)+1}], 0, v{vT}")
        A(f"v_bfe_u32 v{vT+2+i%2}, v{pc(i)+2}, 1, 10")
        A(f"v_add_u32 v{vT+2+i%2}, v{vT+2+i%2}, v{vG[i%2]}")
    for i in ids:
        A(f"v_mov_b32 v{vB+i}, s{sNw}")
        A(f"v_mbcnt_lo_u32_b32 v{vB+i}, s{mk(i)}, v{vB+i}")
        A(f"v_mbcnt_hi_u32_b32 v{vB+i}, s{mk(i)+1}, v{vB+i}")
        A(f"s_bcnt1_i32_b64 s{sT}, s[{mk(i)}:{mk(i)+1}]")
        A(f"s_add_u32 s{sNw}, s{sNw}, s{sT}")
        A(f"v_lshl_add_u32 v{vT+4+i%2}, v{vB+i}, 2, s{sRing}")
        A(f"v_min_u32 v{vB+i}, {CAPW-1}, v{vB+i}")
        A(f"v_lshl_add_u32 v{vT+6+i%2}, v{vB+i}, 3, s{sShW}")
    for i in ids:
        A(f"s_mov_b64 exec, s[{mk(i)}:{mk(i)+1}]")
        A(f"ds_write_b32 v{vT+4+i%2}, v{vT+2+i%2}")
        A(f"ds_write_b64 v{vT+6+i%2}, v[{pc(i)}:{pc(i)+1}]")
    A("s_mov_b64 exec, -1")

def p1b(ids, first):
    for i in ids:
        A(f"v_bfe_u32 v{vT+8+i%2}, v{pc(i)+2}, 12, 6")
        A(f"v_lshrrev_b32 v{vKey+i}, 26, v{pc(i)+2}")
        if o.rot:
            A(f"v_subrev_u32 v{vKey+i}, s99, v{vKey+i}")
            A(f"v_add_u32 v{vT+10}, 40, v{vKey+i}")
            A(f"v_min_u32 v{vKey+i}, v{vKey+i}, v{vT+10}")
        A(f"v_mad_u32_u24 v{vKey+i}, v{vT+8+i%2}, 40, v{vKey+i}")
        A(f"v_lshl_add_u32 v{vKey+i}, v{vKey+i}, 2, s100")
        A(f"v_lshl_add_u32 v{vT+8+i%2}, v{vT+8+i%2}, 2, s100")
        A(f"v_add_u32 v{vB+i}, s{sRecW}, v{vB+i}")
    for i in ids:
        A(f"s_mov_b64 exec, s[{mk(i)}:{mk(i)+1}]")
        if first: A(f"ds_add_u32 v{vT+8+i%2}, v{v64} offset:{DEG-HIST}")
        A(f"ds_add_rtn_u32 v{vRank+i}, v{vKey+i}, v{vOne}")
    A("s_mov_b64 exec, -1")

def ext_group(g):
    A(f"s_movk_i32 s{sRem}, {SPIN}")
    A(f"s_branch L_x{g}_chk")
    A(f"L_x{g}_again:")
    for h in range(2):
        A(f"s_mov_b64 exec, s[{40+2*h}:{41+2*h}]")
        A(f"s_cbranch_execz L_x{g}_s{h}")
        ent_load(2 * g + h)
        A(f"L_x{g}_s{h}:")
    A("s_mov_b64 exec, -1")
    A("s_waitcnt vmcnt(0)")
    A(f"L_x{g}_chk:")
    A(f"v_cmp_ne_u32 vcc, s{sNon}, v{pc(2*g)+3}")
    A(f"v_cmp_ne_u32 s[44:45], s{sNon}, v{pc(2*g+1)+3}")
    A("s_and_b64 vcc, vcc, s[40:41]")
    A("s_and_b64 s[44:45], s[44:45], s[42:43]")
    A("s_or_b64 vcc, vcc, s[44:45]")
    A(f"s_cbranch_scc0 L_x{g}_ok")
    A(f"s_sub_u32 s{sRem}, s{sRem}, 1")
    A(f"s_cbranch_scc0 L_x{g}_again")
    A(f"ds_write_b32 v{vFlag}, v{vOne}")
    A("s_mov_b64 s[40:41], 0")
    A("s_mov_b64 s[42:43], 0")
    A(f"L_x{g}_ok:")
    for h in range(2):
        A(f"v_cndmask_b32 v{pc(2*g+h)+2}, 0, v{pc(2*g+h)+2}, s[{40+2*h}:{41+2*h}]")
    p1a([2 * g, 2 * g + 1])
    p1b([2 * g, 2 * g + 1], True)

def per_group(first, body, tag):
    if not first:
        body([0]); return
    body([0, 1])
    for g in (1, 2, 3):
        A(f"s_cmp_lt_u32 s{sG2}, {g}")
        A(f"s_cbranch_scc1 L_{tag}")
        body([2 * g, 2 * g + 1])
    A(f"L_{tag}:")

def sort_rest(first, tag):
    A("s_waitcnt lgkmcnt(0)")
    A("s_barrier")
    if first: stamp(8)
    if first and o.reset:
        A(f"s_or_b32 s{sT}, s2, s{sWave}")
        A("s_cbranch_scc1 L_noreset")
        srd(sTMP, 50, 51, 256)
        A(f"v_mov_b32 v{vT}, 0")
        A("s_mov_b64 exec, 1")
        A(f"buffer_store_dword v{vT}, v{vT}, s[{sTMP}:{sTMP+3}], 0 offen {SC}")
        A("s_mov_b64 exec, -1")
        A("L_noreset:")
    A(f"v_lshlrev_b32 v{vT}, 2, v1")
    A(f"v_add_u32 v{vT}, {HIST}, v{vT}")
    if first:
        A(f"ds_read_b32 v{vT+1}, v{vT} offset:{DEG-HIST}")
        A(f"s_mul_i32 s{sT+1}, s{sWave}, 5")
        A(f"v_add_u32 v{vT+3}, s{sT+1}, v1")
        A("s_mov_b32 exec_hi, 0xff")
        A("s_waitcnt lgkmcnt(0)")
        for k in range(5):
            A(f"v_readlane_b32 s{40+k}, v{vT+1}, s{sT+1}")
            A(f"s_add_u32 s{sT+1}, s{sT+1}, 1")
        for k in range(5):
            A(f"v_cmp_lt_u32 vcc, s{40+k}, v{vT+1}")
            A(f"s_bcnt1_i32_b64 s{40+k}, vcc")
        for k in range(5):
            A(f"v_writelane_b32 v{vT+2}, s{40+k}, {k}")
        A("s_mov_b64 exec, 0x1f")
        A(f"v_lshrrev_b32 v{vT+4}, 3, v{vT+2}")
        A(f"v_lshlrev_b32 v{vT+5}, 2, v{vT+4}")
        A(f"s_mov_b32 s40, {o.pattern}")
        A(f"v_lshrrev_b32 v{vT+5}, v{vT+5}, s40")
        A(f"v_xor_b32 v{vT+2}, v{vT+2}, v{vT+5}")
        A(f"v_and_b32 v{vT+2}, 7, v{vT+2}")
        A(f"v_lshl_add_u32 v{vT+2}, v{vT+2}, 3, v{vT+4}")
        A(f"v_lshlrev_b32 v{vT+2}, 2, v{vT+2}")
        A(f"v_add_u32 v{vT+2}, {NODE}, v{vT+2}")
        A(f"ds_write_b32 v{vT+2}, v{vT+3}")
        A("s_mov_b64 exec, -1")
        for m in o.sched[1]: rec_dma(m, tag)
        A("s_waitcnt lgkmcnt(0)")
        A("s_barrier")
    A(f"s_lshl_b32 s{sT}, s{sWave}, 5")
    A(f"s_add_u32 s{sT}, s{sT}, {NODE}")
    A(f"v_mov_b32 v{vT+1}, s{sT}")
    A(f"ds_read_b128 v[{vT+4}:{vT+7}], v{vT+1}")
    A(f"ds_read_b32 v{vT+8}, v{vT+1} offset:16")
    A("s_waitcnt lgkmcnt(0)")
    A(f"s_movk_i32 s{sT}, 160")
    for k in range(5):
        A(f"v_mad_u32_u24 v{vT+4+k}, v{vT+4+k}, s{sT}, v{vT}")
        A(f"ds_read_b32 v{vT+10+k}, v{vT+4+k}")
    A(f"s_mul_i32 s{sT}, s{sWave}, {LSTRIDE//8}")
    A(f"s_add_u32 s{sT}, s{sT}, {LIST//8}")
    A("s_waitcnt lgkmcnt(0)")
    A(f"v_add3_u32 v{vT}, v{vT+10}, v{vT+11}, v{vT+12}")
    A(f"v_add3_u32 v{vT}, v{vT}, v{vT+13}, v{vT+14}")
    A(f"v_mov_b32 v{vT+1}, v{vT}")
    dpp_scan(vT + 1)
    A("s_nop 0")
    A(f"v_readlane_b32 s{sCnt}, v{vT+1}, 39")
    A(f"v_sub_u32 v{vT+1}, v{vT+1}, v{vT}")
    A(f"v_add_u32 v{vT+1}, s{sT}, v{vT+1}")
    A(f"s_mov_b32 s{sT}, 0x1000000")
    A("s_mov_b32 exec_hi, 0xff")
    for k in range(5):
        A(f"ds_write_b32 v{vT+4+k}, v{vT+1}")
        if k < 4: A(f"v_add3_u32 v{vT+1}, v{vT+1}, v{vT+10+k}, s{sT}")
    A("s_mov_b32 exec_hi, -1")
    if first:
        A(f"s_cmp_le_u32 s{sCnt}, {CAPL}")
        A(f"s_cbranch_scc1 L_nof_{tag}")
        A(f"ds_write_b32 v{vFlag}, v{vOne}")
        A(f"L_nof_{tag}:")
        for m in o.sched[2]: rec_dma(m, tag)
    A("s_waitcnt lgkmcnt(0)")
    A("s_barrier")
    if first: stamp(9)
    if first:
        A(f"ds_read_b32 v{vT+28}, v{vFlag}")
    def p3a(ids):
        for i in ids:
            A(f"ds_read_b32 v{vKey+i}, v{vKey+i}")
        for i in ids:
            A(f"v_lshrrev_b32 v{vT+2*i}, 18, v{pc(i)+2}")
            A(f"v_lshlrev_b32 v{vT+2*i}, 10, v{vT+2*i}")
            A(f"v_mov_b32 v{vT+2*i+1}, v{vB+i}")
    per_group(first, p3a, f"p3a_{tag}")
    A("s_waitcnt lgkmcnt(0)")
    if first:
        A(f"v_readfirstlane_b32 s{sT}, v{vT+28}")
        A(f"s_cmp_lg_u32 s{sT}, 0")
        A("s_cbranch_scc1 L_goslow")
    def p3b(ids):
        for i in ids:
            A(f"v_lshrrev_b32 v{vT+29}, 21, v{vKey+i}")
            A(f"v_or_b32 v{vT+2*i}, v{vT+2*i}, v{vT+29}")
            A(f"v_and_b32 v{vKey+i}, 0xffffff, v{vKey+i}")
            A(f"v_add_lshl_u32 v{vKey+i}, v{vRank+i}, v{vKey+i}, 3")
        for i in ids:
            A(f"s_mov_b64 exec, s[{mk(i)}:{mk(i)+1}]")
            A(f"ds_write_b64 v{vKey+i}, v[{vT+2*i}:{vT+2*i+1}]")
        A("s_mov_b64 exec, -1")
    per_group(first, p3b, f"p3b_{tag}")
    if first:
        for m in o.sched[3]: rec_dma(m, tag)
    A("s_waitcnt lgkmcnt(0)")
    A("s_barrier")

def idx_reads(p, off):
    A(f"ds_read_b32 v{ENT[p]}, v{vEntA} offset:{off}")
    A(f"ds_read_b32 v{vRA}, v{vRiA} offset:{off}")
    A(f"ds_read_b32 v{vRB}, v{vRiB} offset:{off}")

def rec_reads():
    A(f"v_lshl_add_u32 v{vRA}, v{vRA}, 5, v{vKh}")
    A(f"v_lshl_add_u32 v{vRB}, v{vRB}, 3, s101")
    A(f"ds_read_b64 v[{SHV}:{SHV+1}], v{vRB}")
    A(f"s_mov_b64 exec, s[{sM1}:{sM1+1}]")
    A(f"ds_read_b128 v[{A1}:{A1+3}], v{vRA}")
    A(f"s_mov_b64 exec, s[{sM2}:{sM2+1}]")
    A(f"ds_read_b128 v[{A2}:{A2+3}], v{vRA}")
    A("s_mov_b64 exec, -1")

def rw_mfma(q):
    H, hf = q >> 1, q & 1
    d = RW + 16 * H
    a = A1 if hf == 0 else A2
    b = WR + (H * 2 + hf) * 4
    c = "0" if hf == 0 else f"v[{d}:{d+15}]"
    A(f"v_mfma_f32_32x32x16_bf16 v[{d}:{d+15}], v[{a}:{a+3}], v[{b}:{b+3}], {c}")

def am_dot(u, half):
    if half == 0:
        A(f"v_dot2_f32_bf16 v{AMF+u}, v{SHV}, v{CG+2*u}, 0")
    else:
        A(f"v_dot2_f32_bf16 v{AMF+u}, v{SHV+1}, v{CG+2*u+1}, v{AMF+u}")

def am_cvt():
    A(f"v_cvt_pk_bf16_f32 v{AM}, v{AMF}, v{AMF+1}")
    A(f"v_cvt_pk_bf16_f32 v{AM+1}, v{AMF+2}, v{AMF+3}")

def tr_reads(e):
    xb = XB[e % 2]
    A(f"ds_read_b64_tr_b16 v[{xb}:{xb+1}], v{vTR} offset:{(e % D)*1024}")
    A(f"ds_read_b64_tr_b16 v[{xb+2}:{xb+3}], v{vTR} offset:{(e % D)*1024+512}")

def tp_mfma(e):
    xb, tp = XB[e % 2], TP[e % 2]
    A(f"v_mfma_f32_4x4x4_16b_bf16 v[{tp}:{tp+3}], v[{AM}:{AM+1}], v[{xb}:{xb+1}], 0 cbsz:4 abid:{e % 16}")
    A(f"v_mfma_f32_4x4x4_16b_bf16 v[{tp+4}:{tp+7}], v[{AM}:{AM+1}], v[{xb+2}:{xb+3}], 0 cbsz:4 abid:{e % 16}")

def dma_x(e):
    A(f"s_mov_b32 m0, s{sSlot + e % D}")
    A(f"s_and_b32 s{sT}, s{sE + e % 16}, 0xfffffc00")
    A(f"buffer_load_dwordx4 v{vDMA}, s[{sX}:{sX+3}], s{sT} offen lds")

def fmas(e):
    tp = TP[e % 2]
    odd = e % 2
    if o.pk == 2 and odd:
        A(f"v_mov_b32 v12, v{RW + e % 16}")
        A(f"v_mov_b32 v14, v{RW + 16 + e % 16}")
    A(f"s_set_gpr_idx_on s{sE + e % 16}, gpr_idx(SRC2,DST)")
    for H in range(2):
        rw = RW + 16 * H + e % 16
        if (o.pk and not odd) or o.pk == 2:
            if odd: rw = 12 + 2 * H
            for w in (0, 2):
                a = ACC + 4 * H + w
                A(f"v_pk_fma_f32 v[{a}:{a+1}], v[{tp+4*H+w}:{tp+4*H+w+1}], v[{rw}:{rw+1}], v[{a}:{a+1}] op_sel_hi:[1,0,1]")
        else:
            for w in range(4):
                A(f"v_fmac_f32 v{ACC + 4*H + w}, v{tp + 4*H + w}, v{rw}")
    A("s_set_gpr_idx_off")

def wave_addrs():
    A(f"s_mul_i32 s{sT}, s{sWave}, {LSTRIDE}")
    A(f"s_add_u32 s{sT}, s{sT}, {LIST}")
    A(f"v_lshl_add_u32 v{vEntA}, v1, 3, s{sT}")
    A(f"s_add_u32 s{sT}, s{sT}, 4")
    A(f"v_lshrrev_b32 v{vRiB}, 2, v1")
    A(f"v_lshl_add_u32 v{vRiB}, v{vRiB}, 3, s{sT}")
    A(f"v_bfe_u32 v12, v1, 3, 2")
    A(f"v_and_b32 v13, 3, v1")
    A(f"v_lshl_add_u32 v12, v12, 2, v13")
    A(f"v_lshl_add_u32 v{vRiA}, v12, 3, s{sT}")

vWa = 246
sWo = 63
def wo_block():
    t = 224 + 4
    for i in range(4):
        A(f"ds_read2_b64 v[{WT+4*i}:{WT+4*i+3}], v{vWa} offset0:{i*64} offset1:{i*64+32}")
    A(f"v_add_u32 v{vWa}, 8192, v{vWa}")
    A("s_waitcnt lgkmcnt(0)")
    A(f"s_set_gpr_idx_on s{sWo}, gpr_idx(DST)")
    for a in range(4):
        for j in range(4):
            r = WT + 4 * j + (a >> 1)
            A(f"v_perm_b32 v{WO + a*16 + j}, v{r+2}, v{r}, s{44 + (a & 1)}")
    A("s_set_gpr_idx_off")
    A(f"s_add_u32 s{sWo}, s{sWo}, 4")

WT = 228
def epi_addrs():
    A(f"s_and_b32 s{sT+1}, s{sWave}, 1")
    A(f"s_lshl_b32 s{sT}, s{sT+1}, 3")
    A(f"s_bfe_u32 s{sT+1}, s{sWave}, 0x10001")
    A(f"s_lshl_b32 s{sT+1}, s{sT+1}, 6")
    A(f"s_add_u32 s{sT}, s{sT}, s{sT+1}")
    A(f"s_add_u32 s{sT}, s{sT}, s{sRing}")
    A(f"v_mul_u32_u24 v{eT}, 48, v1")
    A(f"v_add_u32 v{eT}, s{sT}, v{eT}")
    A(f"v_lshrrev_b32 v12, 4, v1")
    A(f"v_bfe_u32 v13, v1, 2, 2")
    A(f"v_and_b32 v14, 3, v1")
    A(f"v_lshl_add_u32 v{eR}, v12, 3, v13")
    A(f"v_mul_u32_u24 v{eR}, 48, v{eR}")
    A(f"v_lshl_add_u32 v{eR}, v14, 13, v{eR}")
    A(f"v_and_b32 v15, 1, v14")
    A(f"v_lshl_add_u32 v{eR}, v15, 3, v{eR}")
    A(f"v_lshrrev_b32 v15, 1, v14")
    A(f"v_lshl_add_u32 v{eR}, v15, 6, v{eR}")
    A(f"s_lshr_b32 s{sT}, s{sWave}, 2")
    A(f"s_bfe_u32 s42, s{sWave}, 0x10001")
    A(f"s_xor_b32 s42, s42, s{sT}")
    A(f"s_lshl_b32 s43, s{sT}, 2")
    A(f"s_add_u32 s43, s43, {FLAG+8}")
    A(f"v_mov_b32 v{eC}, s43")
    A(f"s_lshl_b32 s40, s{sT}, 15")
    A(f"s_lshl_b32 s41, s42, 3")
    A(f"s_add_u32 s40, s40, s41")
    A(f"v_add_u32 v{eR}, s40, v{eR}")
    A(f"s_lshl_b32 s40, s{sT}, 7")
    A(f"s_lshl_b32 s41, s42, 2")
    A(f"s_add_u32 s40, s40, s41")
    A(f"s_add_u32 s40, s40, {NODE}")
    A(f"v_lshl_add_u32 v{eN}, v12, 5, s40")
    A(f"v_and_b32 v13, 15, v1")
    A(f"s_and_b32 s41, s{sWave}, 1")
    A(f"s_lshl_b32 s41, s41, 7")
    A(f"v_lshl_add_u32 v{eN+1}, v13, 3, s41")
    A(f"v_lshl_add_u32 v{vWa}, v12, 11, v{eN+1}")
    A(f"v_add_u32 v{vWa}, {WOL}, v{vWa}")
    A(f"s_mov_b32 s{sWo}, 0")
    A(f"s_mov_b32 s62, s42")

def small_frags():
    t = WO
    A(f"v_lshrrev_b32 v13, 5, v1")
    A(f"v_bfe_u32 v14, v1, 4, 1")
    A(f"v_lshlrev_b32 v13, 14, v13")
    A(f"v_lshl_add_u32 v13, v14, 5, v13")
    A(f"v_bfe_u32 v12, v1, 2, 2")
    A(f"v_lshl_add_u32 v13, v12, 8, v13")
    A(f"v_and_b32 v12, 3, v1")
    A(f"v_lshl_add_u32 v13, v12, 3, v13")
    A(f"v_lshlrev_b32 v14, 1, v12")
    for i in range(16):
        if i == 12: A("s_waitcnt lgkmcnt(4)")
        A(f"ds_read_u16 v{t+i}, v14 offset:{7168 + i*8}")
    A("s_waitcnt lgkmcnt(4)")
    for H in range(2):
        for hf in range(2):
            for tt in range(2):
                r = WR + (H * 2 + hf) * 4 + 2 * tt
                A(f"ds_read_b64_tr_b16 v[{r}:{r+1}], v13 offset:{32768 + 7168 + tt*8192 + H*128 + hf*64}")
    A("s_waitcnt lgkmcnt(8)")
    for q in range(8):
        A(f"v_lshl_or_b32 v{CG+q}, v{t+2*q+1}, 16, v{t+2*q}")
    A("s_waitcnt lgkmcnt(0)")

def wout_dma(sEA=sEA):
    srd(sEA, 46, 47, 32768)
    A(f"s_lshl_b32 s{sT}, s{sWave}, 12")
    A(f"s_add_u32 m0, s{sT}, {WOL}")
    A("s_nop 0")
    for q in range(4):
        A(f"buffer_load_dwordx4 v{vL16}, s[{sEA}:{sEA+3}], s{sT} offen offset:{q*1024} lds")

def small_dma():
    A(f"s_add_u32 m0, s{sRing}, 7168")
    A(f"s_cmp_ge_u32 s{sWave}, 4")
    A(f"s_cbranch_scc1 L_wr")
    A(f"s_cmp_lg_u32 s{sWave}, 0")
    A(f"s_cbranch_scc1 L_cg")
    srd(sTMP, 42, 43, 128)
    A("v_lshlrev_b32 v12, 2, v1")
    A(f"buffer_load_dword v12, s[{sTMP}:{sTMP+3}], 0 offen lds")
    A(f"s_branch L_cg")
    A(f"L_wr:")
    srd(sTMP, 44, 45, 4096)
    A(f"s_and_b32 s{sT}, s{sWave}, 3")
    A(f"s_lshl_b32 s{sT}, s{sT}, 10")
    A(f"buffer_load_dwordx4 v{vL16}, s[{sTMP}:{sTMP+3}], s{sT} offen lds")
    A(f"L_cg:")

def rec_consts():
    A(f"s_mul_i32 s{sEaW}, s{sWave}, {CAPW*32}")
    A(f"s_add_u32 s{sEaW}, s{sEaW}, {EAL}")
    A(f"s_mul_i32 s{sShW}, s{sWave}, {CAPW*8}")
    A(f"s_add_u32 s{sShW}, s{sShW}, {SHL}")
    A(f"v_and_b32 v{vP3}, 1, v1")
    A(f"v_lshlrev_b32 v{vP3}, 4, v{vP3}")
    A(f"v_lshrrev_b32 v{vFl}, 1, v1")
    A(f"v_lshl_add_u32 v{vFl}, v{vFl}, 2, s{sRing}")

def nonce_wait(tag):
    A(f"s_movk_i32 s{sRem}, {SPIN}")
    A("v_mov_b32 v12, 0")
    A(f"L_non{tag}:")
    A("s_waitcnt vmcnt(0)")
    A(f"v_readfirstlane_b32 s{sNon}, v{vN}")
    A(f"s_cmp_lg_u32 s{sNon}, 0")
    A(f"s_cbranch_scc1 L_non_ok{tag}")
    A(f"s_sub_u32 s{sRem}, s{sRem}, 1")
    A(f"s_cbranch_scc1 L_non_ok{tag}")
    A(f"buffer_load_dword v{vN}, v12, s[{sWS}:{sWS+3}], 0 offen {SC}")
    A(f"s_branch L_non{tag}")
    A(f"L_non_ok{tag}:")
    A(f"ds_write_b32 v{vFlag}, v{vN} offset:4")

def setup():
    A("v_lshrrev_b32 v12, 2, v1")
    A(f"s_lshl_b32 s{sT}, s{sWave}, 5")
    A(f"v_add_u32 v12, s{sT}, v12")
    A("v_and_b32 v13, 3, v1")
    A("v_lshlrev_b32 v13, 4, v13")
    A(f"s_movk_i32 s{sT}, {GST}")
    A(f"v_mad_u32_u24 v{vEo[0]}, v12, s{sT}, v13")
    A(f"v_mul_u32_u24 v{vG[0]}, {CH}, v12")
    A(f"v_cmp_gt_u32 vcc, {G1-16}, v12")
    A("v_bfrev_b32 v15, 2")
    A(f"v_add_u32 v{vEo[1]}, {16*GST}, v{vEo[0]}")
    A(f"v_add_u32 v{vG[1]}, {16*CH}, v{vG[0]}")
    A(f"v_cndmask_b32 v{vEo[1]}, v15, v{vEo[1]}, vcc")
    A("s_mov_b64 s[94:95], vcc")
    A(f"s_and_b32 s{sEntO}, s2, 7")
    A(f"s_lshl_b32 s{sEntO}, s{sEntO}, 5")
    A(f"s_lshr_b32 s{sT+1}, s2, 3")
    A(f"s_or_b32 s{sEntO}, s{sEntO}, s{sT+1}")
    A(f"s_lshl_b32 s{sEntO}, s{sEntO}, 6")
    A(f"s_add_u32 s98, s{sEntO}, {PLN}")
    A(f"s_add_u32 s99, s{sEntO}, {2*PLN}")
    if o.epoll == 1: ent_load(0, True); ent_load(1, True)
    sort_init(True)
    if o.epoll == 2: ent_load(0, True); ent_load(1, True)
    A(f"s_mul_i32 s{sRecW}, s{sWave}, {CAPW}")
    A(f"s_mov_b32 s100, {HIST}")
    if o.rot:
        A(f"s_and_b32 s99, s2, {o.rot[0]}")
        A(f"s_mul_i32 s99, s99, {o.rot[1]}")
    rec_consts()

def setup2():
    srd(sOUT, 48, 49, N * 1024)
    srd(sX, 32, 33, N * 1024)
    for q in range(D):
        A(f"s_add_u32 s{sSlot+q}, s{sRing}, {q*1024}")
    A(f"s_mov_b32 s101, {SHL}")
    A(f"s_mov_b32 s{sM1}, 0x0f0f0f0f\ns_mov_b32 s{sM1+1}, 0x0f0f0f0f")
    A(f"s_mov_b32 s{sM2}, 0xf0f0f0f0\ns_mov_b32 s{sM2+1}, 0xf0f0f0f0")
    A(f"s_mov_b32 s{sMode}, 0")
    A(f"s_mov_b32 s{sRound}, 0")
    if o.swz == 0:
        A(f"v_bfe_u32 v{8}, v1, 2, 2")
        A(f"v_lshrrev_b32 v12, 4, v1")
        A(f"v_and_b32 v13, 3, v1")
        A(f"v_lshlrev_b32 v{vDMA}, 8, v{8}")
        A(f"v_lshl_add_u32 v{vDMA}, v12, 6, v{vDMA}")
        A(f"v_lshl_add_u32 v{vDMA}, v13, 4, v{vDMA}")
        A(f"v_lshrrev_b32 v14, 5, v1")
        A(f"v_lshl_add_u32 v{vTR}, v14, 8, s{sRing}")
        A(f"v_lshl_add_u32 v{vTR}, v{8}, 6, v{vTR}")
        A(f"v_and_b32 v15, 1, v12")
        A(f"v_lshl_add_u32 v{vTR}, v15, 5, v{vTR}")
        A(f"v_lshl_add_u32 v{vTR}, v13, 3, v{vTR}")

    else:
        A("v_bfe_u32 v8, v1, 3, 2")
        A("v_lshrrev_b32 v14, 5, v1")
        A("v_and_b32 v12, 7, v1")
        A("v_bfe_u32 v13, v1, 4, 1")
        A("v_lshlrev_b32 v13, 2, v13")
        A("v_xor_b32 v12, v12, v13")
        A(f"v_lshlrev_b32 v{vDMA}, 8, v8")
        A(f"v_lshl_add_u32 v{vDMA}, v14, 7, v{vDMA}")
        A(f"v_lshl_add_u32 v{vDMA}, v12, 4, v{vDMA}")
        A("v_bfe_u32 v8, v1, 2, 2")
        A("v_lshrrev_b32 v12, 4, v1")
        A("v_and_b32 v13, 2, v8")
        A("v_xor_b32 v12, v12, v13")
        A(f"v_lshl_add_u32 v{vTR}, v8, 7, s{sRing}")
        A(f"v_lshl_add_u32 v{vTR}, v12, 5, v{vTR}")
        A("v_and_b32 v13, 3, v1")
        A(f"v_lshl_add_u32 v{vTR}, v13, 3, v{vTR}")
    A(f"v_lshlrev_b32 v{vKh}, 4, v14")
    A(f"v_add_u32 v{vKh}, {EAL}, v{vKh}")
    wave_addrs()
    for r in range(0, 48, 2): A(f"v_mov_b64 v[{ACC+r}:{ACC+r+1}], 0")
    for r in range(0, 8, 2): A(f"v_mov_b64 v[{A1+r}:{A1+r+1}], 0")

def producer():
    Q, d, sr, bb, rk = 128, 140, 144, 148, 152
    oA, oB = 156, 157
    A(f"s_or_b32 s{sT}, s2, s{sWave}")
    A("s_cbranch_scc1 L_nopub")
    A("s_lshl_b32 s62, s62, 3")
    A("s_or_b32 s62, s62, 0x80000000")
    A("v_mov_b32 v12, s62")
    A("v_mov_b32 v13, 0")
    A("s_mov_b64 exec, 1")
    A(f"buffer_store_dword v12, v13, s[{sWS}:{sWS+3}], 0 offen {SC}")
    A("s_mov_b64 exec, -1")
    A("L_nopub:")
    srd(sTMP, 36, 37, E * 4)
    A(f"buffer_load_dword v{d}, v{oA}, s[{sTMP}:{sTMP+3}], s72 offen")
    A("s_mov_b64 exec, 0xffff")
    A(f"buffer_load_dword v{d+1}, v{oB}, s[{sTMP}:{sTMP+3}], s72 offen")
    srd(sOUT, 34, 35, E * 4)
    srd(sSH, 38, 39, E * 8)
    A(f"buffer_load_dword v{sr+1}, v{oB}, s[{sOUT}:{sOUT+3}], s72 offen")
    A(f"v_lshlrev_b32 v13, 1, v{oB}")
    A("s_lshl_b32 s73, s72, 1")
    A(f"buffer_load_dwordx2 v[{Q+4}:{Q+5}], v13, s[{sSH}:{sSH+3}], s73 offen")
    A("s_mov_b64 exec, -1")
    A(f"buffer_load_dword v{sr}, v{oA}, s[{sOUT}:{sOUT+3}], s72 offen")
    A(f"v_lshlrev_b32 v13, 1, v{oA}")
    A(f"buffer_load_dwordx2 v[{Q}:{Q+1}], v13, s[{sSH}:{sSH+3}], s73 offen")
    A(f"s_cmp_lg_u32 s{sWave}, 0")
    A("s_cbranch_scc1 L_py")
    A("v_mov_b32 v12, 0")
    A(f"buffer_load_dword v{vN}, v12, s[{sWS}:{sWS+3}], 0 offen {SC}")
    A("L_py:")
    nw = 0
    if o.wpos == -1:
        wout_dma(); nw = 4
    if o.npx:
        if o.pref == 'x': srd(sX, 32, 33, N * 1024)
        else: srd(sX, 40, 41, E * 32)
        A(f"s_lshr_b32 s{sT}, s2, 3")
        A(f"s_sub_u32 s{sT+1}, s{sWave}, {8-o.npx}")
        A(f"s_mul_i32 s{sT+1}, s{sT+1}, 31")
        A(f"s_add_u32 s{sT}, s{sT}, s{sT+1}")
        A(f"s_lshl_b32 s{sT}, s{sT}, 13")
        A(f"s_cmp_lt_u32 s{sWave}, {8-o.npx}")
        A(f"s_cselect_b32 s{sT}, {N*1024 if o.pref == 'x' else E*32}, s{sT}")
        A("v_lshlrev_b32 v12, 7, v1")
        A(f"buffer_load_dword v228, v12, s[{sX}:{sX+3}], s{sT} offen")
        nw += 1
    A(f"v_lshl_or_b32 v{Q+2}, v0, 1, 1")
    A(f"v_lshrrev_b32 v{Q+6}, 1, v{oB}")
    A(f"v_or_b32 v{Q+6}, 1, v{Q+6}")
    A("s_movk_i32 s74, 40")
    A(f"s_mov_b32 s75, {CNT}")
    A(f"v_lshlrev_b32 v14, 4, v0")
    A("v_and_b32 v8, 3, v0")
    A("v_and_b32 v15, 0x1fc, v0")
    A("v_add_u32 v15, s75, v15")
    stamp(1)
    A("s_barrier")
    if o.wpos == -2:
        wout_dma(); nw += 4
    A(f"s_waitcnt vmcnt({4+nw})")
    stamp(24)
    for i in range(2):
        if i == 1: A("s_mov_b64 exec, 0xffff")
        A(f"v_mul_u32_u24 v12, 52429, v{d+i}")
        A(f"v_lshrrev_b32 v12, 21, v12")
        A("v_and_b32 v13, 7, v12")
        A(f"v_lshrrev_b32 v{bb+i}, 3, v12")
        A(f"v_lshl_or_b32 v{bb+i}, v13, 5, v{bb+i}")
        A(f"v_lshl_add_u32 v13, v{bb+i}, 2, s75")
        A(f"ds_add_rtn_u32 v{rk+i}, v13, v{vOne}")
        A(f"v_mul_u32_u24 v12, s74, v12")
        A(f"v_sub_u32 v12, v{d+i}, v12")
        A(f"v_lshl_or_b32 v{Q+4*i+2}, v12, 12, v{Q+4*i+2}")
        A(f"v_lshlrev_b32 v{bb+i}, 6, v{bb+i}")
    A("s_mov_b64 exec, -1")
    if o.wpos == -3:
        wout_dma(); nw += 4
    A(f"s_waitcnt vmcnt({nw})")
    A(f"s_cmp_lg_u32 s{sWave}, 0")
    A("s_cbranch_scc1 L_nre")
    A(f"v_readfirstlane_b32 s{sNon}, v{vN}")
    A("v_mov_b32 v12, 0")
    A(f"s_cmp_lg_u32 s{sNon}, 0")
    A("s_cbranch_scc1 L_nre")
    A(f"buffer_load_dword v{vN}, v12, s[{sWS}:{sWS+3}], 0 offen {SC}")
    A("L_nre:")
    if o.stamps: A(f"v_writelane_b32 v{vST}, s{sNon}, 27")
    stamp(25)
    for i in range(2):
        A(f"v_lshl_or_b32 v{Q+4*i+2}, v{sr+i}, 18, v{Q+4*i+2}")
    A("s_waitcnt lgkmcnt(0)")
    for i in range(2):
        A(f"v_lshrrev_b32 v12, 2, v{rk+i}")
        A(f"v_and_b32 v13, 3, v{rk+i}")
        A(f"v_lshl_add_u32 v{bb+i}, v12, 14, v{bb+i}")
        A(f"v_cmp_gt_u32 vcc, 16, v{rk+i}")
        A(f"v_lshl_add_u32 v{bb+i}, v13, 4, v{bb+i}")
        A("s_mov_b64 exec, vcc" if i == 0 else "s_and_b64 exec, vcc, 0xffff")
        A(f"ds_write_b96 v{bb+i}, v[{Q+4*i}:{Q+4*i+2}]")
        A("s_mov_b64 exec, -1")
    A(f"s_cmp_lg_u32 s{sWave}, 0")
    A("s_cbranch_scc1 L_non_done")
    A(f"s_cmp_lg_u32 s{sNon}, 0")
    A("s_cbranch_scc1 L_non_okp")
    nonce_wait("p")
    A("L_non_done:")
    if o.wpos == -4: wout_dma()
    stamp(26)
    srd(sWS, 60, 61, WS_BYTES)
    A(f"s_mul_i32 s72, s2, {GST}")
    A("s_add_u32 s73, s72, 8192")
    A("s_waitcnt lgkmcnt(0)")
    A("s_barrier")
    stamp(2)
    C, T0 = 64, 68
    A(f"ds_read_b32 v13, v{vFlag} offset:4")
    for q in range(2):
        A(f"ds_read_b32 v{C+q}, v15 offset:{q*512}")
        A(f"ds_read_b96 v[{T0+4*q}:{T0+4*q+2}], v14 offset:{q*8192}")
    for q in range(2):
        A(f"ds_read_b96 v[{T0+8+4*q}:{T0+8+4*q+2}], v14 offset:{16384 + q*8192}")
    A("s_waitcnt lgkmcnt(6)")
    A(f"v_readfirstlane_b32 s{sNon}, v13")
    A(f"s_cmp_eq_u32 s{sNon}, 0")
    A("s_cbranch_scc1 L_nostore")
    for q in range(2):
        A(f"s_waitcnt lgkmcnt({4 - 2*q})")
        A(f"v_cmp_lt_u32 vcc, v8, v{C+q}")
        A(f"v_max_u32 v13, 1, v{C+q}")
        A(f"v_add_u32 v13, -1, v13")
        A(f"v_cndmask_b32 v{T0+4*q+2}, 0, v{T0+4*q+2}, vcc")
        A(f"v_lshrrev_b32 v13, 2, v13")
        A(f"v_min_u32 v13, 4, v13")
        A(f"v_or_b32 v{T0+4*q+3}, s{sNon}, v13")
        A(f"buffer_store_dwordx4 v[{T0+4*q}:{T0+4*q+3}], v14, s[{sWS}:{sWS+3}], s{72+q} offen {o.pfl}")
    def plane(k, R):
        A("v_add_u32 v8, 4, v8")
        A(f"s_add_u32 s72, s72, {PLN}")
        A(f"s_add_u32 s73, s73, {PLN}")
        A("s_waitcnt lgkmcnt(0)")
        for q in range(2):
            A(f"v_cmp_lt_u32 vcc, {4*k}, v{C+q}")
            A(f"v_cmp_lt_u32 s[64:65], v8, v{C+q}")
            A(f"v_mov_b32 v{R+4*q+3}, s{sNon}")
            A("s_mov_b64 exec, vcc")
            A(f"s_cbranch_execz L_n{k}{q}")
            A(f"v_cndmask_b32 v{R+4*q+2}, 0, v{R+4*q+2}, s[64:65]")
            A(f"buffer_store_dwordx4 v[{R+4*q}:{R+4*q+3}], v14, s[{sWS}:{sWS+3}], s{72+q} offen {o.pfl}")
            A(f"L_n{k}{q}:")
            A("s_mov_b64 exec, -1")
    plane(1, T0 + 8)
    A(f"v_max_u32 v13, v{C}, v{C+1}")
    A("v_cmp_lt_u32 vcc, 8, v13")
    A("s_cmp_eq_u64 vcc, 0")
    A("s_cbranch_scc1 L_nostore")
    for q in range(4):
        A(f"ds_read_b96 v[{164+4*q}:{164+4*q+2}], v14 offset:{32768 + q*8192}")
    plane(2, 164)
    plane(3, 172)
    A("L_nostore:")
    A("s_waitcnt lgkmcnt(0)")
    A("s_barrier")

def kernel():
    A(f".globl {KN}\n.p2align 8\n.type {KN},@function\n{KN}:")
    A(f"s_cmp_ge_u32 s2, {NB}")
    A("s_cbranch_scc1 L_main_end")
    stamp(0)
    A("s_load_dwordx16 s[32:47], s[0:1], 0")
    A("s_load_dwordx4 s[48:51], s[0:1], 64")
    A("s_load_dwordx2 s[60:61], s[0:1], 80")
    A("s_memrealtime s[62:63]")
    A("v_lshrrev_b32 v11, 6, v0")
    A("v_and_b32 v1, 63, v0")
    A(f"v_readfirstlane_b32 s{sWave}, v11")
    if o.cpf:
        A(f"s_cmp_lg_u32 s{sWave}, 2")
        A("s_cbranch_scc1 L_nocpf")
        A("s_getpc_b64 s[4:5]")
        A("L_pc:")
        A("v_lshlrev_b32 v12, 7, v1")
        A("v_mov_b32 v13, s5")
        A("v_add_co_u32 v12, vcc, s4, v12")
        A("s_nop 1")
        A("v_addc_co_u32 v13, vcc, 0, v13, vcc")
        A("global_load_dword v236, v[12:13], off")
        A("v_add_co_u32 v12, vcc, 0x2000, v12")
        A("s_nop 1")
        A("v_addc_co_u32 v13, vcc, 0, v13, vcc")
        A("v_cmp_gt_u32 vcc, (L_main_end-L_pc-0x2000)/128, v1")
        A("s_mov_b64 exec, vcc")
        A("global_load_dword v237, v[12:13], off")
        A("s_mov_b64 exec, -1")
        A("L_nocpf:")
    A(f"v_lshlrev_b32 v{vL16}, 4, v1")
    A(f"v_mov_b64 v[{vT}:{vT+1}], 0")
    A(f"v_mov_b32 v{vFlag}, {FLAG}")
    A(f"ds_write_b32 v{vFlag}, v{vT}")
    A(f"ds_write_b64 v{vFlag}, v[{vT}:{vT+1}] offset:8")
    A(f"v_lshlrev_b32 v12, 2, v0")
    A(f"v_add_u32 v12, {CNT}, v12")
    A(f"ds_write_b32 v12, v{vT}")
    A(f"s_lshl_b32 s{sRing}, s{sWave}, 13")
    A(f"s_mul_i32 s72, s2, {CH*4}")
    A(f"v_lshlrev_b32 v156, 2, v0")
    A(f"s_lshl_b32 s{sT}, s{sWave}, 6")
    A(f"s_add_u32 s{sT}, s{sT}, 2048")
    A(f"v_lshl_add_u32 v157, v1, 2, s{sT}")
    A(f"v_mov_b32 v{vOne}, 1")
    A("s_waitcnt lgkmcnt(0)")
    srd(sWS, 50, 51, 256)
    producer()
    stamp(3)
    if o.wpos == 0: wout_dma()
    small_dma()
    srd(sEA, 40, 41, E * 32)
    setup()
    stamp(4)
    if o.epoll == 0: ent_load(0, True); ent_load(1, True)
    if o.s2pos == 0: setup2()
    if o.epoll == 3: ent_load(0, True); ent_load(1, True)
    if o.npy:
        sd = sX if o.pref == 'x' else sEA
        A(f"s_lshr_b32 s{sT}, s2, 3")
        A(f"s_sub_u32 s{sT+1}, s{sWave}, {8-o.npy-o.npx}")
        A(f"s_mul_i32 s{sT+1}, s{sT+1}, 31")
        A(f"s_add_u32 s{sT}, s{sT}, s{sT+1}")
        A(f"s_lshl_b32 s{sT}, s{sT}, 13")
        A(f"s_cmp_lt_u32 s{sWave}, {8-o.npy}")
        A(f"s_cselect_b32 s{sT}, {N*1024 if o.pref == 'x' else E*32}, s{sT}")
        A("v_lshlrev_b32 v12, 7, v1")
        A(f"buffer_load_dword v229, v12, s[{sd}:{sd+3}], s{sT} offen")
    A("s_waitcnt vmcnt(2) lgkmcnt(0)" if o.sfearly else "s_waitcnt lgkmcnt(0)")
    A("s_barrier")
    if o.sfearly:
        small_frags()
        epi_addrs()
    A(f"s_movk_i32 s{sRem}, {SPIN}")
    stamp(5)
    stamp(6)
    A(f"s_cmp_eq_u32 s{sNon}, 0")
    A("s_cbranch_scc1 L_ent_to")
    if o.npy:
        A("s_waitcnt vmcnt(1)")
        A("s_branch L_ent_chk1")
    A("L_ent_chk:")
    A("s_waitcnt vmcnt(0)")
    A("L_ent_chk1:")
    A(f"v_xor_b32 v{vT+30}, s{sNon}, v{pc(0)+3}")
    A(f"v_xor_b32 v{vT+31}, s{sNon}, v{pc(1)+3}")
    A(f"v_cmp_lt_u32 s[40:41], 7, v{vT+30}")
    A(f"v_cmp_lt_u32 s[42:43], 7, v{vT+31}")
    A("s_and_b64 s[42:43], s[42:43], s[94:95]")
    A("s_or_b64 vcc, s[40:41], s[42:43]")
    A("s_cbranch_scc0 L_ent_ok")
    A(f"s_sub_u32 s{sRem}, s{sRem}, 1")
    A("s_cbranch_scc1 L_ent_to")
    if o.sleep: A(f"s_sleep {o.sleep}")
    for h in range(2):
        A(f"s_wqm_b64 exec, s[{40+2*h}:{41+2*h}]")
        A(f"s_cbranch_execz L_er{h}")
        ent_load(h)
        A(f"L_er{h}:")
    A("s_mov_b64 exec, -1")
    A("s_branch L_ent_chk")
    A("L_ent_to:")
    A("s_waitcnt vmcnt(0)")
    A(f"ds_write_b32 v{vFlag}, v{vOne}")
    A(f"v_mov_b32 v{pc(0)+2}, 0")
    A(f"v_mov_b32 v{pc(1)+2}, 0")
    A(f"v_mov_b64 v[{vT+30}:{vT+31}], 0")
    A("L_ent_ok:")
    if o.stamps: A(f"v_writelane_b32 v{vST}, s{sRem}, 21")
    stamp(7)
    A(f"v_cndmask_b32 v{vT+31}, 0, v{vT+31}, s[94:95]")
    A(f"s_mov_b32 s{sNw}, 0")
    A(f"s_mov_b32 s{sG2}, 0")
    A(f"v_cmp_ne_u32 s[40:41], 0, v{vT+30}")
    A(f"v_cmp_ne_u32 s[42:43], 0, v{vT+31}")
    for h in range(2):
        A(f"s_mov_b64 exec, s[{40+2*h}:{41+2*h}]")
        A(f"s_cbranch_execz L_e1{h}")
        ent_load(2 + h, True)
        A(f"s_mov_b32 s{sG2}, 1")
        A(f"v_cmp_lt_u32 vcc, 1, v{vT+30+h}")
        A("s_mov_b64 exec, vcc")
        A(f"s_cbranch_execz L_e1{h}")
        ent_load(4 + h, True)
        A(f"L_e1{h}:")
    A("s_mov_b64 exec, -1")
    p1a([0, 1])
    for m in range(o.nf):
        A(f"ds_read_b32 v{vT+16+m}, v{vFl} offset:{m*128}")
    p1b([0, 1], True)
    A("s_waitcnt lgkmcnt(4)")
    for m in range(o.nf): rec_dma(m, "f", False)
    if o.s2pos == 1: setup2()
    A(f"s_cmp_eq_u32 s{sG2}, 0")
    A("s_cbranch_scc1 L_noext")
    A(f"s_max_u32 s{sNw}, s{sNw}, {32*o.nf}")
    A(f"s_waitcnt vmcnt({o.nf})")
    ext_group(1)
    for g in (2, 3):
        A(f"v_cmp_lt_u32 s[40:41], {g-1}, v{vT+30}")
        A(f"v_cmp_lt_u32 s[42:43], {g-1}, v{vT+31}")
        A("s_or_b64 vcc, s[40:41], s[42:43]")
        A("s_cbranch_scc0 L_noext")
        A(f"s_mov_b32 s{sG2}, {g}")
        if g == 3:
            A(f"s_add_u32 s99, s99, {PLN}")
            A(f"v_mov_b32 v{pc(2*g)+3}, 0")
            A(f"v_mov_b32 v{pc(2*g+1)+3}, 0")
        ext_group(g)
    A(f"v_max_u32 v{vT}, v{vT+30}, v{vT+31}")
    A(f"v_cmp_eq_u32 vcc, 4, v{vT}")
    A("s_mov_b64 exec, vcc")
    A(f"ds_write_b32 v{vFlag}, v{vOne}")
    A("s_mov_b64 exec, -1")
    A("L_noext:")
    for m in range(o.nf, 5):
        A(f"ds_read_b32 v{vT+16+m}, v{vFl} offset:{m*128}")
    A(f"s_cmp_le_u32 s{sNw}, {CAPW}")
    A("s_cbranch_scc1 L_nwok")
    A(f"ds_write_b32 v{vFlag}, v{vOne}")
    A("L_nwok:")
    if o.sched[0]:
        A("s_waitcnt lgkmcnt(0)")
        for m in o.sched[0]: rec_dma(m, "f")
    sort_rest(True, "f")
    A("L_sweep:")
    if o.wpos == 5:
        A(f"s_cmp_lg_u32 s{sRound}, 0")
        A("s_cbranch_scc1 L_now5")
        wout_dma(sTMP)
        A("L_now5:")
    idx_reads(0, 0)
    A("s_waitcnt lgkmcnt(0)")
    for e in range(D + 1):
        A(f"v_readlane_b32 s{sE+e}, v{ENT[0]}, {e}")
    nx = o.nx
    for e in range(nx):
        dma_x(e)
    stamp(17)
    if not o.sfearly:
        A(f"s_cmp_lg_u32 s{sRound}, 0")
        A("s_cbranch_scc1 L_nosf")
        small_frags()
        epi_addrs()
        A("L_nosf:")
    A("s_mov_b32 s44, 0x05040100")
    A("s_mov_b32 s45, 0x07060302")
    stamp(18)
    A(f"s_waitcnt vmcnt({nx})")
    stamp(19)
    A("s_barrier")
    stamp(23)
    A("s_setprio 2")
    rec_reads()
    for e in range(nx, D):
        dma_x(e)
    A(f"s_sub_u32 s{sRem}, s{sCnt}, 1")
    A("s_cbranch_scc1 L_sweep_done")
    A(f"s_waitcnt vmcnt({D-1})")
    tr_reads(0)
    A("s_waitcnt lgkmcnt(2)")
    for h in range(2):
        for u in range(4): am_dot(u, h)
    for q in range(4): rw_mfma(q)
    am_cvt()
    A(f"s_waitcnt vmcnt({D-2})")
    tr_reads(1)
    A("s_waitcnt lgkmcnt(2)")
    tp_mfma(0)
    dma_x(D)
    if o.adapt:
        A(f"s_and_b32 s{sT}, s{sWave}, 4")
        A(f"s_add_u32 s{sT}, s{sT}, s{sCnt}")
        A(f"s_cmp_ge_u32 s{sT}, {o.adapt[2]}")
        A("s_cselect_b64 vcc, -1, 0")
    stamp(10)
    A("L_loop:")
    for j in range(16):
        A(f"; ---- step {j}")
        if o.adapt:
            A(f"s_waitcnt vmcnt({o.adapt[0]})")
            A(f"s_cbranch_vccnz L_dp{j}")
            A(f"s_waitcnt vmcnt({o.adapt[1]})")
            A(f"L_dp{j}:")
        else:
            A(f"s_waitcnt vmcnt({o.vm})")
        tr_reads(j + 2)
        A(f"v_readlane_b32 s{sE + (j + D + 1) % 16}, v{ENT[0]}, {j + D + 1}")
        A(f"s_waitcnt lgkmcnt({5 if j in (1, 4) else 2})")
        if j == 15:
            am_cvt()
            A(f"v_mov_b32 v{ENT[0]}, v{ENT[1]}")
            A("s_nop 0")
        tp_mfma(j + 1)
        dma_x(j + D + 1)
        if j == 0:
            idx_reads(1, 128)
            A(f"v_add_u32 v{vEntA}, 128, v{vEntA}")
            A(f"v_add_u32 v{vRiA}, 128, v{vRiA}")
            A(f"v_add_u32 v{vRiB}, 128, v{vRiB}")
        if j == 3:
            rec_reads()
        if j == o.woj:
            A(f"s_cmp_ge_u32 s{sWo}, 16")
            A("s_cbranch_scc1 L_nowb")
            wo_block()
            A("L_nowb:")
        if j == 8:
            for u in range(4): am_dot(u, 0)
        if j == 9:
            for u in range(4): am_dot(u, 1)
        fmas(j)
        A(f"s_sub_u32 s{sRem}, s{sRem}, 1")
        A("s_cbranch_scc1 L_sweep_done")
        if j == 15:
            for q in range(4): rw_mfma(q)
            A("s_branch L_loop")
    A("L_sweep_done:")
    A(f"s_cmp_lg_u32 s{sMode}, 0")
    A("s_cbranch_scc1 L_slownext")
    A("L_epi:")
    A("s_setprio 0")
    stamp(11)
    for k in range(5):
        for H in range(2):
            a = ACC + 8 * k + 4 * H
            t = 64 + (k * 2 + H) * 2
            A(f"v_cvt_pk_bf16_f32 v{t}, v{a}, v{a+1}")
            A(f"v_cvt_pk_bf16_f32 v{t+1}, v{a+2}, v{a+3}")
    A("s_waitcnt vmcnt(0)")
    for k in range(5):
        for H in range(2):
            t = 64 + (k * 2 + H) * 2
            A(f"ds_write_b64 v{eT}, v[{t}:{t+1}] offset:{H*64*48 + k*8}")
    A("s_mov_b64 exec, 1")
    A(f"ds_add_u32 v{eC}, v{vOne}")
    A("s_mov_b64 exec, -1")
    A(f"s_mul_i32 s{sT}, s2, {NPB*1024}")
    for u in range(3):
        A(f"ds_read_b32 v{eO+u}, v{eN} offset:{u*8}")
    A(f"s_cmp_lt_u32 s{sWo}, 16")
    A("s_cbranch_scc1 L_wfin")
    A("L_gw:")
    A(f"ds_read_b32 v15, v{eC}")
    A("s_waitcnt lgkmcnt(0)")
    A("v_readfirstlane_b32 s43, v15")
    A("s_cmp_ge_u32 s43, 4")
    A("s_cbranch_scc1 L_gok")
    A("s_sleep 1")
    A("s_branch L_gw")
    A("L_gok:")
    stamp(12)
    def breads(u):
        for s in range(4):
            for tt in range(2):
                r = 16 + u * 16 + s * 4 + 2 * tt
                A(f"ds_read_b64_tr_b16 v[{r}:{r+1}], v{eR} offset:{u*16 + (32*s + 4*tt)*48}")
    def fins(uf):
        df = 64 + uf * 16
        oo = 112 + uf * 8
        return [[f"v_cvt_pk_bf16_f32 v{oo+2*r}, v{df+r}, v{df+4+r}",
                 f"v_cvt_pk_bf16_f32 v{oo+2*r+1}, v{df+8+r}, v{df+12+r}",
                 f"buffer_store_dwordx2 v[{oo+2*r}:{oo+2*r+1}], v{eO+uf}, s[{sOUT}:{sOUT+3}], s{sT} offen offset:{r*256} {o.stfl}"] for r in range(4)]
    def mmf(u, uf):
        d = 64 + u * 16
        fl = fins(uf) if uf is not None else []
        n = 0
        for s in range(4):
            for a in range(4):
                b = 16 + u * 16 + s * 4
                w = WO + (a * 4 + s) * 4
                c = "0" if s == 0 else f"v[{d+4*a}:{d+4*a+3}]"
                A(f"v_mfma_f32_16x16x32_bf16 v[{d+4*a}:{d+4*a+3}], v[{b}:{b+3}], v[{w}:{w+3}], {c}")
                n += 1
                if fl and n >= 8 and n % 2 == 0:
                    for x in fl.pop(0): A(x)
    def fin(u):
        for g in fins(u):
            for x in g: A(x)
    breads(0)
    breads(1)
    for u in range(3):
        A(f"v_lshl_add_u32 v{eO+u}, v{eO+u}, 10, v{eN+1}")
    A("s_waitcnt lgkmcnt(8)")
    breads(2)
    mmf(0, None)
    A("s_waitcnt lgkmcnt(8)")
    mmf(1, 0)
    A(f"s_cmp_lg_u32 s62, 0")
    A("s_cbranch_scc1 L_epi2")
    A("s_waitcnt lgkmcnt(0)")
    mmf(2, 1)
    A("s_nop 7")
    fin(2)
    A("s_branch L_epi3")
    A("L_epi2:")
    A("s_nop 7")
    fin(1)
    A("L_epi3:")
    if o.stamps:
        stamp(13)
        A("s_waitcnt vmcnt(0)")
        stamp(14)
        A(f"v_writelane_b32 v{vST}, s{sCnt}, 20")
        srd(sWS, 60, 61, 0x10000000)
        A(f"s_lshl_b32 s{sT}, s2, 3")
        A(f"s_add_u32 s{sT}, s{sT}, s{sWave}")
        A(f"s_lshl_b32 s{sT}, s{sT}, 8")
        A(f"s_add_u32 s{sT}, s{sT}, 0x8000000")
        A("v_lshlrev_b32 v7, 2, v1")
        A(f"buffer_store_dword v{vST}, v7, s[{sWS}:{sWS+3}], s{sT} offen")
    A("L_main_end:")
    A("s_endpgm")
    A("L_wfin:")
    wo_block()
    A(f"s_cmp_lt_u32 s{sWo}, 16")
    A("s_cbranch_scc1 L_wfin")
    A("s_branch L_gw")
    A("L_slownext:")
    A(f"s_add_u32 s{sRound}, s{sRound}, 1")
    A(f"s_cmp_ge_u32 s{sRound}, {E // CAPL}")
    A("s_cbranch_scc1 L_epi")
    A("s_branch L_slowload")
    A("L_goslow:")
    A(f"s_mov_b32 s{sMode}, 1")
    o.pcb = 228
    A("L_slowload:")
    A("s_waitcnt vmcnt(0) lgkmcnt(0)")
    A("s_barrier")
    wave_addrs()
    A(f"s_mul_i32 s{sT}, s{sRound}, {CAPL}")
    A(f"v_add_u32 v{vG[0]}, s{sT}, v0")
    A(f"v_lshlrev_b32 v{vT+23}, 2, v{vG[0]}")
    A(f"v_lshlrev_b32 v{vT+24}, 3, v{vG[0]}")
    srd(sTMP, 36, 37, E * 4)
    A(f"buffer_load_dword v{vT+21}, v{vT+23}, s[{sTMP}:{sTMP+3}], 0 offen")
    srd(sTMP, 34, 35, E * 4)
    A(f"buffer_load_dword v{vT+22}, v{vT+23}, s[{sTMP}:{sTMP+3}], 0 offen")
    A(f"buffer_load_dwordx2 v[{pc(0)}:{pc(0)+1}], v{vT+24}, s[{sSH}:{sSH+3}], 0 offen")
    sort_init(False)
    rec_consts()
    A(f"s_mul_i32 s{sT}, s2, {NPB}")
    A("s_waitcnt vmcnt(0)")
    A(f"v_subrev_u32 v{vT+21}, s{sT}, v{vT+21}")
    A(f"v_lshl_or_b32 v{vT+22}, v{vT+22}, 18, 1")
    A(f"v_lshl_or_b32 v{pc(0)+2}, v{vT+21}, 12, v{vT+22}")
    A(f"v_cmp_gt_u32 vcc, {NPB}, v{vT+21}")
    A(f"s_movk_i32 s{sT}, {CAPL}")
    A(f"v_cmp_gt_u32 s[40:41], s{sT}, v0")
    A("s_nop 1")
    A("s_and_b64 vcc, vcc, s[40:41]")
    A("s_nop 1")
    A(f"v_cndmask_b32 v{pc(0)+2}, 0, v{pc(0)+2}, vcc")
    A(f"s_mov_b32 s{sNw}, 0")
    A("s_waitcnt lgkmcnt(0)")
    A("s_barrier")
    p1a([0])
    for m in range(2):
        A(f"ds_read_b32 v{vT+16+m}, v{vFl} offset:{m*128}")
    p1b([0], False)
    A("s_waitcnt lgkmcnt(0)")
    rec_dma(0, "s"); rec_dma(1, "s")
    sort_rest(False, "s")
    A("s_branch L_sweep")

HEADER = """
MACE tensor-product message passing, one launch, 250 workgroups x 8 waves (generated by gen/gen18.py).
kernarg: x src dst sh edge_attr cg w_r w_out out debug ws (8 bytes each).
1. every workgroup bins 640 edges by destination bin (40 nodes) and publishes {sh, src|node|edge, tag}
   pieces in ws; the tag is a per-launch word that workgroup 0 hands out through d_debug.
2. every workgroup collects the pieces of its own bin, deals its nodes to the waves by degree and sorts
   each wave's edges by source row (L2 locality only).
3. per edge: x row -> LDS (DMA), 4x4x4 MFMA with the edge's cg.sh matrix, times edge_attr@w_r (32x32x16
   MFMA per 16 edges), accumulated in fp32 registers picked by index; then agg @ w_out by MFMA.
Bins that overflow a fixed capacity, or hand-offs that do not arrive, fall back to a general path that
scans dst itself, so the result does not depend on the edge distribution or on co-residency.
"""
def build(path, stamps=False, vm=4, stfl='sc0 sc1', sleep=0, pat=(0, 2, 3, 1, 7), cpf=1, late=1, wpos=-4, nph=5, pref='x', nf=1, sched=([1], [], [], [2, 3, 4]), epoll=3, s2pos=0, npx=1, reset=1, ffl='sc1', pfl='sc1', rot=None, npy=0, spin=4000, swz=1, yprio=0, pk=0, adapt=None, nx=7, sfearly=0, woj=6):
    o.nx, o.sfearly, o.woj = nx, sfearly, woj
    o.adapt = adapt
    o.pk = pk
    o.yprio = yprio
    o.swz = swz
    global SPIN
    SPIN = spin
    o.npy = npy
    o.rot = rot
    o.ffl, o.pfl = ffl, pfl
    o.reset = reset
    o.npx = npx
    o.s2pos = s2pos
    o.nf, o.sched, o.epoll = nf, sched, epoll
    global L
    o.pcb = PC
    o.nph, o.pref = nph, pref
    o.stamps, o.vm, o.stfl, o.sleep, o.cpf, o.late, o.wpos = stamps, vm, stfl, sleep, cpf, late, wpos
    o.pattern = sum(x << (4 * i) for i, x in enumerate(pat))
    L = []
    for l in HEADER.strip().split("\n"): A("; " + l)
    A(f"; @launch grid=({NB},1,1) block=(512,1,1) lds={LDS_MAIN}")
    A('.amdgcn_target "amdgcn-amd-amdhsa--gfx950"')
    A(".text")
    kernel()
    A('.section .rodata,"a"')
    A(".p2align 6")
    A(desc(KN, NVG, 102))
    open(path, "w").write("\n".join(L) + "\n")

if __name__ == "__main__":
    build("w0.s")
    build("w1.s", nx=5)
    build("w2.s", nx=3)
    build("w3.s", nx=2)
    build("w4.s", nx=3, sfearly=1, epoll=0)
    build("w5.s", nx=0, sfearly=1, epoll=0)
    build("w6.s", woj=12)
    build("w7.s", nx=3, sched=([1], [2, 3, 4], [], []))
    build("w8.s", nx=3, sfearly=1, epoll=0, sched=([1], [2, 3, 4], [], []))
```
